```python
import torch

def _softmax(x, axis=-1):
    return torch.softmax(x, dim=axis)
def _gelu(x):
    return torch.nn.functional.gelu(x, approximate="tanh")
def _silu(x):
    return torch.nn.functional.silu(x)
def _sigmoid(x):
    return torch.sigmoid(x)
def _layernorm(x, axis=-1, eps=1e-5):
    m = x.mean(dim=axis, keepdim=True)
    v = x.var(dim=axis, keepdim=True, unbiased=False)
    return (x - m) / torch.sqrt(v + eps)
def _scatter_add(tgt, idx, src, axis=0):
    return tgt.clone().index_add_(axis, idx, src)
def _segment_sum(src, seg, n):
    out = torch.zeros((n,) + src.shape[1:], dtype=src.dtype)
    return out.index_add_(0, seg, src)
def _pad(x, pw):
    flat = tuple(v for pair in reversed(pw) for v in pair)
    return torch.nn.functional.pad(x, flat)

kernel_name = 'interleave_layers__mha_block_cached__dense_activation_gelu__decode'

def setup_inputs():

    _w = (lambda a: (lambda t: t.to(torch.bfloat16) if t.is_floating_point() else t)(torch.as_tensor(a)))
    def _A_setup():
        B, Sq, D = 1, 1, 512
        H, Sk, Dh = 32, 4096, 128
        return {
            "x": _w((lambda *s: torch.randn(*s, dtype=torch.bfloat16) * 0.05)(B, Sq, D)),
            "k_cache": _w((lambda *s: torch.randn(*s, dtype=torch.bfloat16) * 0.8)(B, H, Sk, Dh)),
            "v_cache": _w((lambda *s: torch.randn(*s, dtype=torch.bfloat16) * 1.6)(B, H, Sk, Dh)),
            "wq": _w((lambda *s: torch.randn(*s, dtype=torch.bfloat16) * 0.8)(D, H * Dh) * (D ** -0.5)),
            "wo": _w((lambda *s: torch.randn(*s, dtype=torch.bfloat16) * 1.6)(H * Dh, D) * ((H * Dh) ** -0.5)),
        }
    _A_in = _A_setup()

    def _B_setup():
        B, S, D, F = 1, 1, 512, 1376
        return {
            "x": _w((lambda *s: torch.randn(*s, dtype=torch.bfloat16) * 0.05)(B, S, D)),
            "w1": _w((lambda *s: torch.randn(*s, dtype=torch.bfloat16) * 0.4)(D, F) * (D ** -0.5)),
            "b1": _w((lambda *s: torch.randn(*s, dtype=torch.bfloat16) * 0.4)(F) * 0.01),
            "w2": _w((lambda *s: torch.randn(*s, dtype=torch.bfloat16) * 0.4)(F, D) * (F ** -0.5)),
            "b2": _w((lambda *s: torch.randn(*s, dtype=torch.bfloat16) * 0.4)(D) * 0.01),
        }
    _B_in = _B_setup()

    return {
        "A_x": _A_in["x"],
        "A_k_cache": _A_in["k_cache"],
        "A_v_cache": _A_in["v_cache"],
        "A_wq": _A_in["wq"],
        "A_wo": _A_in["wo"],
        "B_x": _B_in["x"],
        "B_w1": _B_in["w1"],
        "B_b1": _B_in["b1"],
        "B_w2": _B_in["w2"],
        "B_b2": _B_in["b2"],
    }

def reference(A_x, A_k_cache, A_v_cache, A_wq, A_wo, B_x, B_w1, B_b1, B_w2, B_b2):
    def _A_ref(x, k_cache, v_cache, wq, wo):
        B, Sq, D = x.shape
        H, Dh = 32, 128
        q = (lambda x, *d: x.permute(*d))((x @ wq).reshape(B, Sq, H, Dh), 0, 2, 1, 3)
        scores = torch.einsum("bhqd,bhkd->bhqk", q, k_cache) * (Dh ** -0.5)
        p = _softmax(scores, axis=-1)
        o = torch.einsum("bhqk,bhkd->bhqd", p, v_cache)
        return (lambda x, *d: x.permute(*d))(o, 0, 2, 1, 3).reshape(B, Sq, H * Dh) @ wo

    def _B_ref(x, w1, b1, w2, b2):
        h = torch.einsum("bsd,df->bsf", x, w1) + b1
        h = _gelu(h)
        return torch.einsum("bsf,fd->bsd", h, w2) + b2

    x = A_x
    x = x + _A_ref(_layernorm(x, axis=-1), A_k_cache, A_v_cache, A_wq, A_wo)
    x = x + _B_ref(_layernorm(x, axis=-1), B_w1, B_b1, B_w2, B_b2)
    x = x + _A_ref(_layernorm(x, axis=-1), A_k_cache, A_v_cache, A_wq, A_wo)
    x = x + _B_ref(_layernorm(x, axis=-1), B_w1, B_b1, B_w2, B_b2)
    return x
```

```python
import re

TRANS = ("v_exp_f32", "v_log_f32", "v_rcp_f32", "v_rsq_f32", "v_sqrt_f32", "v_sin_f32", "v_cos_f32")

_reg_re = re.compile(r"^(-|\|)?(abs\()?([vsa])(\d+)\)?\|?$")
_rng_re = re.compile(r"^(-)?([vsa])\[(\d+):(\d+)\]$")


def regs_of(tok):
    tok = tok.strip()
    m = _rng_re.match(tok)
    if m:
        return {(m.group(2), i) for i in range(int(m.group(3)), int(m.group(4)) + 1)}
    m = _reg_re.match(tok)
    if m:
        return {(m.group(3), int(m.group(4)))}
    if tok == "vcc":
        return {("s", 106), ("s", 107)}
    if tok == "vcc_lo":
        return {("s", 106)}
    if tok == "vcc_hi":
        return {("s", 107)}
    if tok == "exec":
        return {("s", 126), ("s", 127)}
    if tok == "exec_lo":
        return {("s", 126)}
    if tok == "exec_hi":
        return {("s", 127)}
    if tok == "m0":
        return {("s", 124)}
    return set()


def split_ops(s):
    out, depth, cur = [], 0, ""
    for ch in s:
        if ch in "[(":
            depth += 1
        if ch in "])":
            depth -= 1
        if ch == "," and depth == 0:
            out.append(cur.strip())
            cur = ""
        else:
            cur += ch
    if cur.strip():
        out.append(cur.strip())
    return out


class Ins:
    __slots__ = ("mn", "kind", "w", "r", "srcc", "ab", "dpp", "wide_store_data", "states", "passes", "lanesel")


def classify(line):
    line = line.split(";")[0].strip()
    parts = line.split(None, 1)
    mn = parts[0]
    rest = parts[1] if len(parts) > 1 else ""
    ops = split_ops(rest)
    mods = ""
    if ops:
        last = ops[-1].split()
        if last:
            ops[-1] = last[0]
            mods = " ".join(last[1:])
    I = Ins()
    I.mn = mn
    I.w, I.r, I.srcc, I.ab = set(), set(), set(), set()
    I.dpp = "_dpp" in mn
    I.wide_store_data = set()
    I.states = 1
    I.passes = 0
    I.lanesel = set()
    base = mn.replace("_e32", "").replace("_e64", "").replace("_dpp", "")
    if mn == "s_nop":
        I.kind = "nop"
        I.states = int(ops[0], 0) + 1
    elif mn.startswith("v_mfma") or mn.startswith("v_smfmac"):
        I.kind = "mfma"
        I.w = regs_of(ops[0])
        I.ab = regs_of(ops[1]) | regs_of(ops[2])
        if mn.startswith("v_smfmac"):
            I.ab |= regs_of(ops[3])
            I.srcc = regs_of(ops[0])
        else:
            I.srcc = regs_of(ops[3])
        I.r = I.ab | I.srcc
        assert "16x16x32_bf16" in mn or "16x16x64_bf16" in mn or "16x16x16_bf16" in mn, mn
        I.passes = 4
        if "smfmac" in mn:
            I.passes = 4
    elif mn.startswith("v_"):
        I.kind = "trans" if base in TRANS else "valu"
        if base.startswith("v_cmp"):
            I.w = regs_of(ops[0])
            if base.startswith("v_cmpx"):
                I.w |= regs_of("exec")
            for o in ops[1:]:
                I.r |= regs_of(o)
        elif base in ("v_permlane32_swap_b32", "v_permlane16_swap_b32"):
            I.kind = "permlane"
            I.w = regs_of(ops[0]) | regs_of(ops[1])
            I.r = set(I.w)
        elif base in ("v_readfirstlane_b32", "v_readlane_b32"):
            I.kind = "readlane"
            I.w = regs_of(ops[0])
            I.r = regs_of(ops[1])
            if len(ops) > 2:
                I.lanesel = regs_of(ops[2])
        elif base == "v_writelane_b32":
            I.w = regs_of(ops[0])
            I.r = regs_of(ops[1]) | regs_of(ops[0])
            I.lanesel = regs_of(ops[2])
        elif base in ("v_add_co_u32", "v_sub_co_u32", "v_addc_co_u32", "v_subb_co_u32"):
            I.w = regs_of(ops[0]) | regs_of(ops[1])
            for o in ops[2:]:
                I.r |= regs_of(o)
        else:
            I.w = regs_of(ops[0])
            for o in ops[1:]:
                I.r |= regs_of(o)
            if base in ("v_fmac_f32", "v_dot2c_f32_bf16", "v_pk_fmac_f16") or I.dpp:
                I.r |= regs_of(ops[0])
            if base == "v_cndmask_b32" and len(ops) == 3:
                I.r |= regs_of("vcc")
    elif mn.startswith("buffer_") or mn.startswith("global_") or mn.startswith("flat_"):
        I.kind = "vmem"
        is_load = "_load" in mn
        if mn.startswith("buffer_"):
            if "lds" in mods.split():
                for o in ops:
                    I.r |= regs_of(o)
            elif is_load:
                I.w = regs_of(ops[0])
                for o in ops[1:]:
                    I.r |= regs_of(o)
            else:
                for o in ops:
                    I.r |= regs_of(o)
                if "x4" in mn or "x3" in mn:
                    I.wide_store_data = regs_of(ops[0])
        else:
            if is_load:
                I.w = regs_of(ops[0])
                for o in ops[1:]:
                    I.r |= regs_of(o)
            else:
                for o in ops:
                    I.r |= regs_of(o)
                if "x4" in mn or "x3" in mn:
                    I.wide_store_data = regs_of(ops[1])
    elif mn.startswith("ds_"):
        I.kind = "ds"
        if mn.startswith("ds_read") or mn.startswith("ds_bpermute") or mn.startswith("ds_swizzle") or mn.startswith("ds_permute"):
            I.w = regs_of(ops[0])
            for o in ops[1:]:
                I.r |= regs_of(o)
        else:
            for o in ops:
                I.r |= regs_of(o)
    elif mn.startswith("s_"):
        I.kind = "salu"
        if mn.startswith("s_cmp") or mn.startswith("s_bitcmp") or mn.startswith("s_cbranch") or mn in (
            "s_branch", "s_waitcnt", "s_barrier", "s_endpgm", "s_setprio", "s_sleep"):
            for o in ops:
                I.r |= regs_of(o)
        else:
            if ops:
                I.w = regs_of(ops[0])
            for o in ops[1:]:
                I.r |= regs_of(o)
            if "saveexec" in mn:
                I.w |= regs_of("exec")
    else:
        raise ValueError("unknown instr " + line)
    return I


VALU_KINDS = ("valu", "trans", "permlane", "readlane")


def vonly(s):
    return {x for x in s if x[0] in "va"}


def sonly(s):
    return {x for x in s if x[0] == "s"}


def need(prod, cons):
    n = 0
    pv = prod.kind in VALU_KINDS
    cv = cons.kind in VALU_KINDS
    if pv:
        wv = vonly(prod.w)
        ws = sonly(prod.w)
        if cons.kind == "mfma" and wv & cons.r:
            n = max(n, 2)
        if cons.dpp and wv & cons.r:
            n = max(n, 2)
        if cons.kind == "permlane" and wv & cons.r:
            n = max(n, 2)
        if cons.kind == "readlane" and wv & cons.r:
            n = max(n, 1)
        if prod.kind == "trans" and cv and cons.kind != "trans" and wv & (cons.r | cons.w):
            n = max(n, 1)
        if prod.kind == "trans" and cons.kind in ("trans", "vmem", "ds") and wv & cons.r:
            n = max(n, 1)
        if ws:
            if cv and ws & sonly(cons.r):
                n = max(n, 2)
            if cv and ws & cons.lanesel:
                n = max(n, 4)
            if cons.kind == "vmem" and ws & sonly(cons.r):
                n = max(n, 5)
            if ws & regs_of("exec"):
                if cons.dpp:
                    n = max(n, 5)
                if cons.kind in ("mfma", "permlane", "readlane"):
                    n = max(n, 4)
            if cons.kind == "salu" and ws & sonly(cons.r):
                n = max(n, 1)
    if prod.kind == "mfma":
        p = prod.passes
        big = {2: 5, 4: 8, 8: 12, 16: 20}[p]
        ovl = {2: 4, 4: 6, 8: 10, 16: 18}[p]
        war = {2: 1, 4: 3, 8: 7, 16: 15}[p]
        if cons.kind == "mfma":
            if prod.w & cons.ab:
                n = max(n, big)
            if prod.w & cons.srcc:
                if not (prod.w == cons.srcc and prod.passes == cons.passes):
                    n = max(n, ovl)
            elif prod.w & cons.w:
                n = max(n, big)
        elif cv or cons.kind in ("vmem", "ds"):
            if prod.w & (cons.r | cons.w):
                n = max(n, big)
            if cv and prod.srcc & cons.w:
                n = max(n, war)
    if prod.kind == "vmem" and prod.wide_store_data:
        if prod.wide_store_data & cons.w:
            n = max(n, 2 if cv or cons.kind == "mfma" else 1)
    if prod.kind == "salu" and ("s", 124) in prod.w and cons.kind in ("vmem", "ds"):
        n = max(n, 1)
    return n


class Asm:
    def __init__(self):
        self.lines = []
        self.hist = []
        self.nlabel = 0
        self.ninstr = 0

    def raw(self, s):
        self.lines.append(s)

    def comment(self, s):
        self.lines.append("    ; " + s)

    def newlabel(self, p="L"):
        self.nlabel += 1
        return f"{p}_{self.nlabel}"

    def label(self, name, safe=False):
        self.lines.append(f"{name}:")

    def flush(self):
        dist = 0
        worst = 0
        for p in reversed(self.hist):
            if p.kind == "mfma":
                req = {2: 5, 4: 8, 8: 12, 16: 20}[p.passes]
            elif p.kind in VALU_KINDS:
                req = 5 if sonly(p.w) - regs_of("vcc") else 2
            elif p.kind == "vmem" and p.wide_store_data:
                req = 2
            else:
                req = 0
            worst = max(worst, req - dist)
            dist += p.states
            if dist > 24:
                break
        return worst

    def __call__(self, line, nohaz=False):
        I = classify(line)
        if not nohaz:
            dist = 0
            pad = 0
            for p in reversed(self.hist):
                n = need(p, I)
                if n - dist > pad:
                    pad = n - dist
                dist += p.states
                if dist > 24:
                    break
            if I.mn.startswith("s_cbranch") or I.mn == "s_branch":
                pad = max(pad, self.flush() - 1)
            while pad > 0:
                k = min(pad, 16)
                self._emit(f"s_nop {k-1}")
                pad -= k
        self._emit(line, I)

    def _emit(self, line, I=None):
        if I is None:
            I = classify(line)
        self.hist.append(I)
        if len(self.hist) > 40:
            self.hist.pop(0)
        self.lines.append("    " + line)
        self.ninstr += 1

    def text(self):
        return "\n".join(self.lines) + "\n"
```

```python
import sys, struct
from emit import Asm

NAME = "interleave_layers__mha_block_cached__dense_activation_gelu__decode"
HEADER = open("cdna_kernels/" + NAME + ".s.ref").read().split("; Override launch")[0]


def f32(x):
    return "0x%08x" % struct.unpack("<I", struct.pack("<f", x))[0]


REC = 4096
QP_OFF = [0x000, 0x500]
ST_OFF = [0x200, 0x700]
CS_OFF = 0x280
OP_OFF = [0x800, 0xC00]
ML_OFF = [0xA00, 0xE00]
G = 0x100000
YP_L = 0x4800
FP0 = G + 0x9000
FP_L = 0x16000
NF = 43
STAMP = 0x8000000

L_WQ = 0x0000
L_WO = 0x4000
L_W1 = 0xC000
L_W2 = 0x14000
L_Q = 0x1C000
L_FLAG = 0x1C100
L_ONES = 0x1C180
L_M = 0x1C200
L_L = 0x1C240
L_O = 0x1C400
L_S3 = 0x1D400
L_XT = 0x1E400
L_H = 0x1E800
L_ST = 0x1F000
L_E = 0x1F100
LDS_BYTES = 0x20000

SRD_K, SRD_V, SRD_WQ, SRD_WO, SRD_W1, SRD_W2, SRD_WS, SRD_X, SRD_B1, SRD_B2, SRD_OUT, SRD_DBG = [32 + 4 * i for i in range(12)]
sC, sJ, sU, sH, sS, sW, sF, sIsS3, sIsFFN, sFast, sTO, sKV, sLayer = range(80, 93)
sT0, sT1, sT2, sT3 = 93, 94, 95, 96
sRecL = 97
sYPL = 98
sFPL = 99
sQPL = 100
sOPL = 101
sPermLo, sPermHi = 14, 15
sScale = 30
sGrp = 31
sM16 = 4
sMg1 = 6
sMg2 = 8
sMg3 = 10
sSave = 12
sClu = 16
sStampT = 18
sMn0 = 20
sOwn = 22


def srd(n):
    return f"s[{n}:{n+3}]"


vLane, vN, vG, vKo, vVo = 1, 2, 3, 4, 5
vTr64 = 6
vTr128 = 7
vTr256 = 8
vXA = 9
vL4 = 10
vStamp = 11
VK = 32
VS0, VS1, VTA = 96, 128, 160
VQB = 192
VSC = 208
VO = 192
VP = 224
VLA = 232
VONE = 236
VWQ = 240
vCS0, vCS1 = 248, 249
vB1, vB2, vXres = 250, 251, 252
VWA, VWB = 128, 144


def vr(b, n):
    return f"v[{b}:{b+n-1}]" if n > 1 else f"v{b}"


def gen(stamps=False):
    a = Asm()
    a.raw(HEADER.rstrip("\n"))
    a.raw(f"; @launch grid=(256,1,1) block=(512,1,1) lds={LDS_BYTES}")
    a.raw('.amdgcn_target "amdgcn-amd-amdhsa--gfx950"')
    a.raw(".text")
    a.raw(f".globl {NAME}_kernel")
    a.raw(".p2align 8")
    a.raw(f".type {NAME}_kernel,@function")
    a.raw(f"{NAME}_kernel:")

    def stamp(k, layered=False):
        if not stamps:
            return
        a(f"s_memrealtime s[{sStampT}:{sStampT+1}]")
        a("s_waitcnt lgkmcnt(0)")
        if layered:
            a(f"s_lshl_b32 s{sStampT+1}, s{sLayer}, 4")
            a(f"s_add_u32 s{sStampT+1}, s{sStampT+1}, {k}")
            a(f"s_mov_b32 m0, s{sStampT+1}")
            a(f"v_writelane_b32 v{vStamp}, s{sStampT}, m0")
        else:
            a(f"v_writelane_b32 v{vStamp}, s{sStampT}, {k}")

    def poll(loads, regs, tmp):
        L = a.newlabel("POLL")
        D = a.newlabel("PDONE")
        a.label(L)
        for ld in loads:
            a(ld)
        a("s_waitcnt vmcnt(0)")
        rs = list(regs)
        if len(rs) == 1:
            cur = rs[0]
        else:
            first = True
            cur = None
            i = 0
            if len(rs) >= 3:
                a(f"v_max3_u32 v{tmp}, v{rs[0]}, v{rs[1]}, v{rs[2]}")
                i = 3
            else:
                a(f"v_max_u32 v{tmp}, v{rs[0]}, v{rs[1]}")
                i = 2
            while i < len(rs):
                if i + 1 < len(rs):
                    a(f"v_max3_u32 v{tmp}, v{tmp}, v{rs[i]}, v{rs[i+1]}")
                    i += 2
                else:
                    a(f"v_max_u32 v{tmp}, v{tmp}, v{rs[i]}")
                    i += 1
            cur = tmp
        a(f"v_cmp_eq_u32 vcc, -1, v{cur}")
        a(f"s_cbranch_vccz {D}")
        a(f"s_add_u32 s{sTO}, s{sTO}, 1")
        a(f"s_cmp_lt_u32 s{sTO}, 40000")
        a(f"s_cbranch_scc1 {L}")
        a.label(D)

    def fast_store(instr):
        Ls = a.newlabel("SLOW")
        Le = a.newlabel("SEND")
        a(f"s_cmp_eq_u32 s{sFast}, 0")
        a(f"s_cbranch_scc1 {Ls}")
        for i in instr:
            a(i)
        a(f"s_branch {Le}")
        a.label(Ls)
        for i in instr:
            a(i + " sc1")
        a.label(Le)

    def bf16round(v, t=None):
        a(f"v_cvt_pk_bf16_f32 v{v}, v{v}, v{v}")
        a(f"v_lshlrev_b32 v{v}, 16, v{v}")

    a("s_cmp_ge_u32 s2, 256")
    a("s_cbranch_scc1 L_END")
    a("s_load_dwordx8 s[4:11], s[0:1], 0")
    a("s_load_dwordx2 s[12:13], s[0:1], 32")
    a("s_load_dwordx8 s[16:23], s[0:1], 48")
    a("s_load_dwordx4 s[24:27], s[0:1], 80")
    a("s_load_dwordx2 s[28:29], s[0:1], 96")
    a(f"v_lshrrev_b32 v{vLane}, 6, v0")
    a(f"s_and_b32 s{sC}, s2, 7")
    a(f"v_readfirstlane_b32 s{sW}, v{vLane}")
    a(f"s_lshr_b32 s{sJ}, s2, 3")
    a(f"s_lshl_b32 s{sU}, s{sC}, 5")
    a(f"s_add_u32 s{sU}, s{sU}, s{sJ}")
    a(f"s_lshr_b32 s{sH}, s{sU}, 3")
    a(f"s_and_b32 s{sS}, s{sU}, 7")
    a(f"v_and_b32 v{vLane}, 63, v0")
    a(f"v_and_b32 v{vN}, 15, v0")
    a(f"v_bfe_u32 v{vG}, v0, 4, 2")
    a(f"v_and_b32 v12, 3, v{vN}")
    a(f"v_lshlrev_b32 v12, 10, v12")
    a(f"v_lshrrev_b32 v13, 2, v{vN}")
    a(f"v_lshl_add_u32 v12, v13, 8, v12")
    a(f"v_lshl_add_u32 v{vKo}, v{vG}, 4, v12")
    a(f"v_lshlrev_b32 v{vVo}, 4, v{vLane}")
    a(f"v_lshlrev_b32 v{vL4}, 2, v{vLane}")
    a(f"s_lshl_b32 s{sKV}, s{sU}, 17")
    a(f"s_lshl_b32 s{sT0}, s{sW}, 14")
    a(f"s_add_u32 s{sKV}, s{sKV}, s{sT0}")
    a(f"s_cmp_lt_u32 s{sJ}, 16")
    a(f"s_cselect_b32 s{sIsS3}, 1, 0")
    a(f"s_min_u32 s{sF}, s{sC}, 3")
    a(f"s_mul_i32 s{sT0}, s{sC}, 5")
    a(f"s_add_u32 s{sF}, s{sF}, s{sT0}")
    a(f"s_add_u32 s{sF}, s{sF}, s{sJ}")
    a(f"s_sub_u32 s{sF}, s{sF}, 16")
    a(f"s_cmp_lt_u32 s{sC}, 3")
    a(f"s_cselect_b32 s{sT0}, 6, 5")
    a(f"s_sub_u32 s{sT1}, s{sJ}, 16")
    a(f"s_cmp_lt_u32 s{sT1}, s{sT0}")
    a(f"s_cselect_b32 s{sIsFFN}, 1, 0")
    a(f"s_cselect_b32 s{sF}, s{sF}, 0")
    a(f"s_mov_b32 s{sTO}, 0")
    a(f"s_mov_b32 s{sLayer}, 0")
    a(f"s_mov_b32 s{sFast}, 0")
    a(f"v_mov_b32 v{vStamp}, 0")
    a("s_waitcnt lgkmcnt(0)")

    def mksrd(n, src, size):
        a(f"s_mov_b32 s{n}, s{src}")
        a(f"s_mov_b32 s{n+1}, s{src+1}")
        a(f"s_mov_b32 s{n+2}, {size}")
        a(f"s_mov_b32 s{n+3}, 0x20000")
    mksrd(SRD_K, 6, 0x2000000)
    mksrd(SRD_V, 8, 0x2000000)
    mksrd(SRD_WQ, 10, 0x400000)
    mksrd(SRD_WO, 12, 0x400000)
    mksrd(SRD_W1, 16, 512 * 2752)
    mksrd(SRD_W2, 20, 1376 * 1024)
    mksrd(SRD_WS, 28, 0x10000000)
    mksrd(SRD_X, 4, 1024)
    mksrd(SRD_B1, 18, 2752)
    mksrd(SRD_B2, 22, 1024)
    mksrd(SRD_OUT, 24, 1024)
    mksrd(SRD_DBG, 26, 256)
    a(f"s_cmp_eq_u32 s{sIsS3}, 1")
    a(f"s_cselect_b32 s{SRD_WO+2}, s{SRD_WO+2}, 0")
    a(f"s_cmp_eq_u32 s{sIsFFN}, 1")
    a(f"s_cselect_b32 s{SRD_W1+2}, s{SRD_W1+2}, 0")
    a(f"s_cselect_b32 s{SRD_W2+2}, s{SRD_W2+2}, 0")
    stamp(0)
    a(f"s_mov_b32 s{sPermLo}, 0x05040100")
    a(f"s_mov_b32 s{sPermHi}, 0x07060302")
    a(f"s_mov_b32 s{sScale}, {f32(1.4426950408889634 / 128 ** 0.5)}")
    a(f"s_mov_b64 s[{sM16}:{sM16+1}], 0xffff")
    a(f"s_mov_b32 s{sMg1}, 0xffff0000")
    a(f"s_mov_b32 s{sMg1+1}, 0")
    a(f"s_mov_b32 s{sMg2}, 0")
    a(f"s_mov_b32 s{sMg2+1}, 0xffff")
    a(f"s_mov_b32 s{sMg3}, 0")
    a(f"s_mov_b32 s{sMg3+1}, 0xffff0000")
    a(f"s_mov_b32 s{sMn0}, 0x00030003")
    a(f"s_mov_b32 s{sMn0+1}, 0x00030003")
    a(f"s_lshl_b32 s{sGrp}, s{sH}, 15")
    a(f"s_lshl_b32 s{sClu}, s{sC}, 17")
    a(f"s_lshl_b32 s{sOwn}, s{sU}, 12")
    a(f"v_lshrrev_b32 v12, 2, v{vN}")
    a(f"v_lshl_add_u32 v12, v{vG}, 3, v12")
    a(f"v_and_b32 v13, 3, v{vN}")
    a(f"v_lshlrev_b32 v13, 3, v13")
    a(f"v_lshl_add_u32 v{vTr64}, v12, 6, v13")
    a(f"v_lshl_add_u32 v{vTr128}, v12, 7, v13")
    a(f"v_lshl_add_u32 v{vTr256}, v12, 8, v13")
    a(f"s_lshl_b32 s{sT0}, s{sW}, 12")
    a(f"v_add_u32 v{vTr64}, s{sT0}, v{vTr64}")
    a(f"v_add_u32 v{vTr128}, s{sT0}, v{vTr128}")
    for i in range(4):
        a(f"v_mov_b32 v{VONE+i}, 0x3f803f80")
    a(f"s_lshl_b32 s{sT0}, s{sW}, 7")
    a(f"s_add_u32 s{sT0}, s{sT0}, {L_XT}")
    a(f"v_lshl_add_u32 v12, v{vG}, 4, s{sT0}")
    a(f"v_mov_b32 v13, {L_ONES}")
    a(f"v_cmp_eq_u32 vcc, 1, v{vN}")
    a(f"v_cndmask_b32 v{vXA}, v12, v13, vcc")

    a(f"s_cmp_lg_u32 s{sW}, 0")
    a("s_cbranch_scc1 L_BULK")
    a("s_setprio 3")
    for i in range(4):
        a(f"v_mov_b32 v{12+i}, -1")
    for i in range(4):
        a(f"buffer_store_dwordx4 v[12:15], v{vVo}, {srd(SRD_WS)}, s{sOwn} offen offset:{i*1024} sc1")
    a(f"s_lshl_b32 s{sT0}, s{sU}, 10")
    a(f"s_add_u32 s{sT0}, s{sT0}, {G}")
    a(f"buffer_store_dwordx4 v[12:15], v{vVo}, {srd(SRD_WS)}, s{sT0} offen sc1")
    a(f"v_add_u32 v16, {L_ONES}, v{vVo}")
    a(f"s_mov_b64 exec, 0xff")
    a(f"ds_write_b128 v16, {vr(VONE,4)}")
    a(f"s_mov_b64 exec, -1")
    a(f"v_lshlrev_b32 v16, 13, v{vG}")
    a(f"v_lshl_add_u32 v16, v{vN}, 4, v16")
    a(f"s_lshl_b32 s{sT0}, s{sS}, 19")
    a(f"s_lshl_b32 s{sT1}, s{sH}, 8")
    a(f"s_add_u32 s{sT0}, s{sT0}, s{sT1}")
    for i in range(16):
        a(f"s_mov_b32 m0, {L_WQ + i*1024}")
        a(f"buffer_load_dwordx4 v16, {srd(SRD_WQ)}, s{sT0} offen nt lds")
        a(f"s_add_u32 s{sT0}, s{sT0}, {4*8192}")
    a(f"v_lshlrev_b32 v17, 4, v{vG}")
    a(f"s_lshl_b32 s{sT0}, s{sS}, 7")
    a(f"buffer_load_dwordx4 v[20:23], v17, {srd(SRD_X)}, s{sT0} offen")
    a(f"buffer_load_dwordx4 v[24:27], v17, {srd(SRD_X)}, s{sT0} offen offset:64")
    a(f"s_getreg_b32 s{sT2}, hwreg(HW_REG_XCC_ID, 0, 4)")
    a(f"s_or_b32 s{sT2}, s{sT2}, 0x10")
    a(f"v_mov_b32 v18, s{sT2}")
    a(f"v_mov_b32 v19, s{sU}")
    a("s_waitcnt vmcnt(0)")
    stamp(1)
    a(f"s_mov_b64 exec, 1")
    a(f"buffer_store_byte v18, v19, {srd(SRD_DBG)}, 0 offen sc1")
    a(f"s_mov_b64 exec, -1")
    a(f"v_cmp_eq_u32 vcc, 1, v{vN}")
    for i in range(8):
        a(f"v_cndmask_b32 v{20+i}, v{20+i}, v{VONE}, vcc")
    for cg in range(8):
        for kc in range(2):
            b = VK + 8 * cg + 4 * kc
            off = L_WQ + kc * 32 * 256 + cg * 32
            a(f"ds_read_b64_tr_b16 {vr(b,2)}, v{vTr256} offset:{off}")
            a(f"ds_read_b64_tr_b16 {vr(b+2,2)}, v{vTr256} offset:{off+1024}")
        if cg % 2 == 1:
            a("s_waitcnt lgkmcnt(0)")
    for cg in range(8):
        a(f"v_mfma_f32_16x16x32_bf16 {vr(VO+4*cg,4)}, v[20:23], {vr(VK+8*cg,4)}, 0")
        a(f"v_mfma_f32_16x16x32_bf16 {vr(VO+4*cg,4)}, v[24:27], {vr(VK+8*cg+4,4)}, {vr(VO+4*cg,4)}")
    a(f"v_mfma_f32_16x16x32_bf16 v[28:31], v[20:23], v[20:23], 0")
    a(f"v_mfma_f32_16x16x32_bf16 v[28:31], v[24:27], v[24:27], v[28:31]")
    a(f"s_mov_b64 exec, s[{sM16}:{sM16+1}]")
    for cg in range(8):
        a(f"buffer_store_dword v{VO+4*cg}, v{vL4}, {srd(SRD_WS)}, s{sOwn} offen offset:{QP_OFF[0]+cg*64} sc1")
        a(f"buffer_store_dword v{VO+4*cg+1}, v{vL4}, {srd(SRD_WS)}, s{sOwn} offen offset:{CS_OFF+cg*64} sc1")
    a(f"s_mov_b64 exec, 1")
    a(f"buffer_store_dwordx2 v[28:29], v{vL4}, {srd(SRD_WS)}, s{sOwn} offen offset:{ST_OFF[0]} sc1")
    a(f"s_mov_b64 exec, -1")
    stamp(2)

    a.label("L_BULK")
    for T in range(4):
        a(f"s_add_u32 s{sT0}, s{sKV}, {T*4096}")
        for j in range(4):
            a(f"buffer_load_dwordx4 {vr(VK+16*T+4*j,4)}, v{vKo}, {srd(SRD_K)}, s{sT0} offen offset:{64*j} nt")
    a(f"v_lshrrev_b32 v12, 2, v{vLane}")
    a(f"v_and_b32 v13, 3, v{vLane}")
    a(f"v_lshlrev_b32 v13, 4, v13")
    a(f"v_lshl_add_u32 v14, v12, 10, v13")
    a(f"s_movk_i32 s{sT0}, 2752")
    a(f"v_mad_u32_u24 v15, v12, s{sT0}, v13")
    a(f"v_lshrrev_b32 v12, 3, v{vLane}")
    a(f"v_and_b32 v13, 7, v{vLane}")
    a(f"v_lshlrev_b32 v13, 4, v13")
    a(f"v_lshl_add_u32 v16, v12, 10, v13")
    a(f"s_lshl_b32 s{sT0}, s{sC}, 19")
    a(f"s_lshl_b32 s{sT1}, s{sW}, 16")
    a(f"s_add_u32 s{sT0}, s{sT0}, s{sT1}")
    a(f"s_lshl_b32 s{sT1}, s{sJ}, 6")
    a(f"s_add_u32 s{sT0}, s{sT0}, s{sT1}")
    a(f"s_lshl_b32 s{sT2}, s{sW}, 12")
    a(f"s_add_u32 s{sT3}, s{sT2}, {L_WO}")
    for i in range(4):
        a(f"s_mov_b32 m0, s{sT3}")
        a(f"buffer_load_dwordx4 v14, {srd(SRD_WO)}, s{sT0} offen nt lds")
        a(f"s_add_u32 s{sT0}, s{sT0}, {16*1024}")
        a(f"s_add_u32 s{sT3}, s{sT3}, 1024")
    for b in range(2):
        for i in range(8):
            if i % 4 == 0:
                a(f"s_add_u32 s{sT0}, s{sKV}, {b*8192 + (i//4)*4096}")
            base = (VS0 if b == 0 else VS1) + 4 * i
            a(f"buffer_load_dwordx4 {vr(base,4)}, v{vVo}, {srd(SRD_V)}, s{sT0} offen offset:{(i%4)*1024} nt")
    a(f"s_mul_i32 s{sT0}, s{sW}, {64*2752}")
    a(f"s_lshl_b32 s{sT1}, s{sF}, 6")
    a(f"s_add_u32 s{sT0}, s{sT0}, s{sT1}")
    a(f"s_add_u32 s{sT3}, s{sT2}, {L_W1}")
    for i in range(4):
        a(f"s_mov_b32 m0, s{sT3}")
        a(f"buffer_load_dwordx4 v15, {srd(SRD_W1)}, s{sT0} offen nt lds")
        a(f"s_add_u32 s{sT0}, s{sT0}, {16*2752}")
        a(f"s_add_u32 s{sT3}, s{sT3}, 1024")
    a(f"s_lshl_b32 s{sT0}, s{sF}, 15")
    a(f"s_lshl_b32 s{sT1}, s{sW}, 7")
    a(f"s_add_u32 s{sT0}, s{sT0}, s{sT1}")
    a(f"s_add_u32 s{sT3}, s{sT2}, {L_W2}")
    for i in range(4):
        a(f"s_mov_b32 m0, s{sT3}")
        a(f"buffer_load_dwordx4 v16, {srd(SRD_W2)}, s{sT0} offen nt lds")
        a(f"s_add_u32 s{sT0}, s{sT0}, {8*1024}")
        a(f"s_add_u32 s{sT3}, s{sT3}, 1024")
    a(f"v_and_b32 v12, 7, v{vN}")
    a(f"v_lshl_add_u32 v12, v{vG}, 3, v12")
    a(f"v_lshlrev_b32 v12, 1, v12")
    a(f"s_lshl_b32 s{sT0}, s{sF}, 6")
    a(f"buffer_load_ushort v{vB1}, v12, {srd(SRD_B1)}, s{sT0} offen")
    a(f"v_lshlrev_b32 v13, 1, v{vLane}")
    a(f"s_lshl_b32 s{sT0}, s{sS}, 7")
    a(f"buffer_load_ushort v{vB2}, v13, {srd(SRD_B2)}, s{sT0} offen")
    a(f"s_lshl_b32 s{sT0}, s{sW}, 7")
    a(f"buffer_load_ushort v{vXres}, v13, {srd(SRD_X)}, s{sT0} offen")
    NAFTER = 4 + 4 + 3
    stamp(3)

    a(f"s_cmp_lg_u32 s{sW}, 0")
    a("s_cbranch_scc1 L_LOOP")
    Lf = a.newlabel("FLAG")
    Lfd = a.newlabel("FLAGD")
    a.label(Lf)
    a(f"buffer_load_dword v12, v{vL4}, {srd(SRD_DBG)}, 0 offen sc1")
    a("s_waitcnt vmcnt(0)")
    a(f"v_and_b32 v13, 0x10101010, v12")
    a(f"v_cmp_ne_u32 vcc, 0x10101010, v13")
    a(f"s_cbranch_vccz {Lfd}")
    a(f"s_add_u32 s{sTO}, s{sTO}, 1")
    a(f"s_cmp_lt_u32 s{sTO}, 40000")
    a(f"s_cbranch_scc1 {Lf}")
    a.label(Lfd)
    a(f"s_getreg_b32 s{sT2}, hwreg(HW_REG_XCC_ID, 0, 4)")
    a(f"s_or_b32 s{sT2}, s{sT2}, 0x10")
    a(f"s_mul_i32 s{sT2}, s{sT2}, 0x01010101")
    a(f"v_cmp_eq_u32 vcc, s{sT2}, v12")
    a(f"s_lshl_b32 s{sT0}, s{sC}, 3")
    a(f"s_lshr_b64 vcc, vcc, s{sT0}")
    a(f"s_and_b32 s{sT0}, vcc_lo, 0xff")
    a(f"s_cmp_eq_u32 s{sT0}, 0xff")
    a(f"s_cselect_b32 s{sT0}, 1, 0")
    a(f"v_mov_b32 v12, s{sT0}")
    a(f"v_mov_b32 v13, {L_FLAG}")
    a(f"ds_write_b32 v13, v12")
    a(f"v_lshlrev_b32 v12, 3, v{vLane}")
    lds_ = []
    for p in range(8):
        lds_.append(f"s_add_u32 s{sT0}, s{sGrp}, {p*REC}")
        lds_.append(f"buffer_load_dwordx2 {vr(VO+2*p,2)}, v12, {srd(SRD_WS)}, s{sT0} offen offset:{CS_OFF} sc1")
    poll(lds_, list(range(VO, VO + 16)), 13)
    a(f"v_add_f32 v{vCS0}, v{VO}, v{VO+2}")
    a(f"v_add_f32 v{vCS1}, v{VO+1}, v{VO+3}")
    for p in range(2, 8):
        a(f"v_add_f32 v{vCS0}, v{vCS0}, v{VO+2*p}")
        a(f"v_add_f32 v{vCS1}, v{vCS1}, v{VO+2*p+1}")
    stamp(4)

    a.label("L_LOOP")
    a(f"s_mul_i32 s{sQPL}, s{sLayer}, {QP_OFF[1]}")
    a(f"s_lshl_b32 s{sOPL}, s{sLayer}, 10")
    a(f"s_mul_i32 s{sYPL}, s{sLayer}, {YP_L}")
    a(f"s_add_u32 s{sYPL}, s{sYPL}, {G}")
    a(f"s_mul_i32 s{sFPL}, s{sLayer}, {FP_L}")
    a(f"s_add_u32 s{sFPL}, s{sFPL}, {FP0}")
    a(f"s_cmp_lg_u32 s{sW}, 0")
    a("s_cbranch_scc1 L_QBAR")
    a(f"v_lshlrev_b32 v12, 3, v{vLane}")
    a(f"v_and_b32 v14, 7, v{vLane}")
    a(f"v_lshlrev_b32 v14, 12, v14")
    a(f"s_add_u32 s{sT1}, s{sGrp}, s{sQPL}")
    lds_ = [f"buffer_load_dwordx2 v[16:17], v14, {srd(SRD_WS)}, s{sT1} offen offset:{ST_OFF[0]} sc1"]
    for p in range(8):
        lds_.append(f"s_add_u32 s{sT0}, s{sT1}, {p*REC}")
        lds_.append(f"buffer_load_dwordx2 {vr(VO+2*p,2)}, v12, {srd(SRD_WS)}, s{sT0} offen sc1")
    poll(lds_, [16, 17] + list(range(VO, VO + 16)), 13)
    stamp(5, True)
    for dpp in ("quad_perm:[1,0,3,2]", "quad_perm:[2,3,0,1]", "row_half_mirror"):
        a(f"v_add_f32_dpp v16, v16, v16 {dpp} row_mask:0xf bank_mask:0xf")
        a(f"v_add_f32_dpp v17, v17, v17 {dpp} row_mask:0xf bank_mask:0xf")
    a(f"v_add_f32 v18, v{VO}, v{VO+2}")
    a(f"v_add_f32 v19, v{VO+1}, v{VO+3}")
    for p in range(2, 8):
        a(f"v_add_f32 v18, v18, v{VO+2*p}")
        a(f"v_add_f32 v19, v19, v{VO+2*p+1}")

    def ln_stats(vss, vs):
        a(f"v_mul_f32 v{vs}, {f32(1/512)}, v{vs}")
        a(f"v_mul_f32 v{vss}, {f32(1/512)}, v{vss}")
        a(f"v_fma_f32 v{vss}, -v{vs}, v{vs}, v{vss}")
        a(f"v_max_f32 v{vss}, 0, v{vss}")
        a(f"v_add_f32 v{vss}, {f32(1e-5)}, v{vss}")
        a(f"v_rsq_f32 v{vss}, v{vss}")
    ln_stats(16, 17)
    a(f"v_fma_f32 v18, -v17, v{vCS0}, v18")
    a(f"v_fma_f32 v19, -v17, v{vCS1}, v19")
    a(f"v_mul_f32 v18, v16, v18")
    a(f"v_mul_f32 v19, v16, v19")
    a(f"v_cvt_pk_bf16_f32 v18, v18, v19")
    a(f"ds_write_b32 v{vL4}, v18 offset:{L_Q & 0xffff}" if L_Q < 65536 else f"v_add_u32 v13, {L_Q}, v{vL4}")
    if L_Q >= 65536:
        a(f"ds_write_b32 v13, v18")
    a("s_waitcnt lgkmcnt(0)")
    a.label("L_QBAR")
    a("s_barrier")
    stamp(6, True)
    a(f"v_lshlrev_b32 v12, 4, v{vG}")
    a(f"v_add_u32 v12, {L_Q}, v12")
    for j in range(4):
        a(f"ds_read_b128 {vr(VQB+4*j,4)}, v12 offset:{64*j}")
    a(f"v_mov_b32 v13, {L_FLAG}")
    a(f"ds_read_b32 v13, v13")
    a(f"s_waitcnt vmcnt({4+16+NAFTER}) lgkmcnt(0)")
    a(f"v_readfirstlane_b32 s{sFast}, v13")
    for T in range(4):
        for j in range(4):
            c = "0" if j == 0 else vr(VSC + 4 * T, 4)
            a(f"v_mfma_f32_16x16x32_bf16 {vr(VSC+4*T,4)}, {vr(VK+16*T+4*j,4)}, {vr(VQB+4*j,4)}, {c}")
    a(f"v_max3_f32 v12, v{VSC}, v{VSC+1}, v{VSC+2}")
    for i in range(3, 15, 2):
        a(f"v_max3_f32 v12, v12, v{VSC+i}, v{VSC+i+1}")
    a(f"v_max_f32 v12, v12, v{VSC+15}")
    a(f"v_mov_b32 v13, v12")
    a(f"v_permlane32_swap_b32 v12, v13")
    a(f"v_max_f32 v12, v12, v13")
    a(f"v_mov_b32 v13, v12")
    a(f"v_permlane16_swap_b32 v12, v13")
    a(f"v_max_f32 v12, v12, v13")
    a(f"v_mul_f32 v12, s{sScale}, v12")
    for i in range(16):
        a(f"v_fma_f32 v{VSC+i}, v{VSC+i}, s{sScale}, -v12")
    for i in range(16):
        a(f"v_exp_f32 v{VSC+i}, v{VSC+i}")
    for i in range(8):
        a(f"v_cvt_pk_bf16_f32 v{VP+i}, v{VSC+2*i}, v{VSC+2*i+1}")
    stamp(7, True)
    VT = [VTA, VS0]
    VSRC = [VS0, VS1]
    for b in range(2):
        Ls = a.newlabel("NOTR")
        a(f"s_cmp_lg_u32 s{sLayer}, 0")
        a(f"s_cbranch_scc1 {Ls}")
        for e2 in range(4):
            a(f"s_waitcnt vmcnt({NAFTER + (8 if b == 0 else 0) + 6 - 2*e2})")
            for d in range(4):
                r0 = VSRC[b] + 4 * (2 * e2) + d
                r1 = VSRC[b] + 4 * (2 * e2 + 1) + d
                a(f"v_perm_b32 v{VT[b] + 4*(2*d) + e2}, v{r1}, v{r0}, s{sPermLo}")
                a(f"v_perm_b32 v{VT[b] + 4*(2*d+1) + e2}, v{r1}, v{r0}, s{sPermHi}")
        a.label(Ls)
        for jj in range(8):
            c = "0" if b == 0 else vr(VO + 4 * jj, 4)
            a(f"v_mfma_f32_16x16x32_bf16 {vr(VO+4*jj,4)}, {vr(VP+4*b,4)}, {vr(VT[b]+4*jj,4)}, {c}")
        c = "0" if b == 0 else vr(VLA, 4)
        a(f"v_mfma_f32_16x16x32_bf16 {vr(VLA,4)}, {vr(VP+4*b,4)}, {vr(VONE,4)}, {c}")
    a(f"s_lshl_b32 s{sT0}, s{sW}, 9")
    a(f"s_add_u32 s{sT0}, s{sT0}, {L_O}")
    a(f"v_lshl_add_u32 v13, v{vN}, 5, s{sT0}")
    a(f"s_lshl_b32 s{sT0}, s{sW}, 2")
    a(f"s_add_u32 s{sT0}, s{sT0}, {L_M}")
    a(f"v_mov_b32 v14, s{sT0}")
    a(f"s_mov_b64 exec, s[{sM16}:{sM16+1}]")
    for k in range(4):
        a(f"ds_write2_b32 v13, v{VO+8*k}, v{VO+8*k+4} offset0:{2*k} offset1:{2*k+1}")
    a(f"ds_write2_b32 v14, v12, v{VLA} offset0:0 offset1:{(L_L-L_M)//4}")
    a(f"s_mov_b64 exec, -1")
    a("s_waitcnt lgkmcnt(0)")
    a("s_barrier")
    stamp(8, True)
    a(f"s_cmp_lg_u32 s{sW}, 0")
    a("s_cbranch_scc1 L_S2DONE")
    a(f"v_mov_b32 v12, {L_M}")
    a(f"ds_read_b128 v[16:19], v12")
    a(f"ds_read_b128 v[20:23], v12 offset:16")
    a(f"ds_read_b128 v[24:27], v12 offset:{L_L-L_M}")
    a(f"ds_read_b128 v[28:31], v12 offset:{L_L-L_M+16}")
    a(f"v_lshlrev_b32 v13, 3, v{vLane}")
    a(f"v_add_u32 v13, {L_O}, v13")
    for w in range(8):
        a(f"ds_read_b64 {vr(VO+2*w,2)}, v13 offset:{512*w}")
    a("s_waitcnt lgkmcnt(10)")
    a(f"v_max3_f32 v14, v16, v17, v18")
    a(f"v_max3_f32 v14, v14, v19, v20")
    a(f"v_max3_f32 v14, v14, v21, v22")
    a(f"v_max_f32 v14, v14, v23")
    for w in range(8):
        a(f"v_sub_f32 v{16+w}, v{16+w}, v14")
    for w in range(8):
        a(f"v_exp_f32 v{16+w}, v{16+w}")
    a("s_waitcnt lgkmcnt(0)")
    a(f"v_mul_f32 v15, v16, v24")
    a(f"v_mul_f32 v{VP}, v16, v{VO}")
    a(f"v_mul_f32 v{VP+1}, v16, v{VO+1}")
    for w in range(1, 8):
        a(f"v_fmac_f32 v15, v{16+w}, v{24+w}")
        a(f"v_fmac_f32 v{VP}, v{16+w}, v{VO+2*w}")
        a(f"v_fmac_f32 v{VP+1}, v{16+w}, v{VO+2*w+1}")
    a(f"v_cvt_pk_bf16_f32 v{VP+2}, v{VP}, v{VP+1}")
    a(f"v_lshlrev_b32 v{VP+3}, 16, v{VP+2}")
    a(f"v_and_b32 v{VP+4}, 0xffff0000, v{VP+2}")
    a(f"v_sub_f32 v{VP}, v{VP}, v{VP+3}")
    a(f"v_sub_f32 v{VP+1}, v{VP+1}, v{VP+4}")
    a(f"v_cvt_pk_bf16_f32 v{VP+3}, v{VP}, v{VP+1}")
    a(f"s_add_u32 s{sT0}, s{sOwn}, s{sOPL}")
    a(f"v_mov_b32 v13, 0")
    fast_store([
        f"buffer_store_dword v{VP+2}, v{vL4}, {srd(SRD_WS)}, s{sT0} offen offset:{OP_OFF[0]}",
        f"buffer_store_dword v{VP+3}, v{vL4}, {srd(SRD_WS)}, s{sT0} offen offset:{OP_OFF[0]+256}",
        f"buffer_store_dwordx2 v[14:15], v13, {srd(SRD_WS)}, s{sT0} offen offset:{ML_OFF[0]}",
    ])
    stamp(9, True)
    a.label("L_S2DONE")
    Lw = a.newlabel("NOW")
    a(f"s_cmp_lg_u32 s{sLayer}, 0")
    a(f"s_cbranch_scc1 {Lw}")
    a(f"s_lshl_b32 s{sT0}, s{sW}, 5")
    a(f"v_add_u32 v12, s{sT0}, v{vTr256}")
    for kc in range(2):
        off = L_WQ + kc * 32 * 256
        a(f"ds_read_b64_tr_b16 {vr(VWQ+4*kc,2)}, v12 offset:{off}")
        a(f"ds_read_b64_tr_b16 {vr(VWQ+4*kc+2,2)}, v12 offset:{off+1024}")
    for cg in range(2):
        for kc in range(2):
            off = L_WO + kc * 32 * 64 + cg * 32
            a(f"ds_read_b64_tr_b16 {vr(VWA+8*cg+4*kc,2)}, v{vTr64} offset:{off}")
            a(f"ds_read_b64_tr_b16 {vr(VWA+8*cg+4*kc+2,2)}, v{vTr64} offset:{off+256}")
    a("s_waitcnt lgkmcnt(0)")
    a.label(Lw)

    a(f"s_cmp_eq_u32 s{sIsS3}, 0")
    a("s_cbranch_scc1 L_S4")
    a(f"v_and_b32 v12, 7, v{vN}")
    a(f"v_lshlrev_b32 v12, 12, v12")
    a(f"v_lshrrev_b32 v13, 3, v{vN}")
    a(f"v_lshl_add_u32 v12, v13, 8, v12")
    a(f"v_lshl_add_u32 v12, v{vG}, 4, v12")
    a(f"s_lshr_b32 s{sT0}, s{sW}, 1")
    a(f"s_lshl_b32 s{sT0}, s{sT0}, 15")
    a(f"s_add_u32 s{sT0}, s{sT0}, s{sClu}")
    a(f"s_add_u32 s{sT0}, s{sT0}, s{sOPL}")
    a(f"s_and_b32 s{sT1}, s{sW}, 1")
    a(f"s_lshl_b32 s{sT1}, s{sT1}, 7")
    a(f"s_add_u32 s{sT1}, s{sT1}, s{sT0}")
    a(f"v_and_b32 v13, 1, v{vG}")
    a(f"v_lshlrev_b32 v13, 2, v13")
    a(f"v_and_or_b32 v13, v{vLane}, 3, v13")
    a(f"v_xor_b32 v14, 4, v13")
    a(f"v_lshlrev_b32 v13, 12, v13")
    a(f"v_lshlrev_b32 v14, 12, v14")
    poll([
        f"buffer_load_dwordx2 v[16:17], v13, {srd(SRD_WS)}, s{sT0} offen offset:{ML_OFF[0]} sc1",
        f"buffer_load_dwordx2 v[18:19], v14, {srd(SRD_WS)}, s{sT0} offen offset:{ML_OFF[0]} sc1",
        f"buffer_load_dwordx4 v[20:23], v12, {srd(SRD_WS)}, s{sT1} offen offset:{OP_OFF[0]} sc1",
        f"buffer_load_dwordx4 v[24:27], v12, {srd(SRD_WS)}, s{sT1} offen offset:{OP_OFF[0]+64} sc1",
    ], list(range(16, 28)), 15)
    stamp(10, True)
    for cg in range(2):
        a(f"v_mfma_f32_16x16x32_bf16 {vr(VO+4*cg,4)}, v[20:23], {vr(VWA+8*cg,4)}, 0")
        a(f"v_mfma_f32_16x16x32_bf16 {vr(VO+4*cg,4)}, v[24:27], {vr(VWA+8*cg+4,4)}, {vr(VO+4*cg,4)}")
    a(f"v_max_f32 v28, v16, v18")
    a(f"v_max_f32_dpp v28, v28, v28 quad_perm:[1,0,3,2] row_mask:0xf bank_mask:0xf")
    a(f"v_max_f32_dpp v28, v28, v28 quad_perm:[2,3,0,1] row_mask:0xf bank_mask:0xf")
    a(f"v_sub_f32 v16, v16, v28")
    a(f"v_sub_f32 v18, v18, v28")
    a(f"v_exp_f32 v16, v16")
    a(f"v_exp_f32 v18, v18")
    a(f"v_mul_f32 v29, v16, v17")
    a(f"v_fmac_f32 v29, v18, v19")
    a(f"v_add_f32_dpp v29, v29, v29 quad_perm:[1,0,3,2] row_mask:0xf bank_mask:0xf")
    a(f"v_add_f32_dpp v29, v29, v29 quad_perm:[2,3,0,1] row_mask:0xf bank_mask:0xf")
    a(f"v_rcp_f32 v29, v29")
    a(f"v_mul_f32 v16, v16, v29")
    for cg in range(2):
        a(f"v_mul_f32_dpp v{30+cg}, v16, v{VO+4*cg} quad_perm:[0,0,0,0] row_mask:0xf bank_mask:0xf")
        for r in range(1, 4):
            a(f"v_fmac_f32_dpp v{30+cg}, v16, v{VO+4*cg+r} quad_perm:[{r},{r},{r},{r}] row_mask:0xf bank_mask:0xf")
    a(f"s_lshl_b32 s{sT0}, s{sW}, 4")
    a(f"s_add_u32 s{sT0}, s{sT0}, {L_S3}")
    a(f"v_lshl_add_u32 v12, v{vN}, 7, s{sT0}")
    a(f"v_lshl_add_u32 v12, v{vG}, 2, v12")
    a(f"ds_write_b32 v12, v30")
    a(f"ds_write_b32 v12, v31 offset:2048")
    a("s_waitcnt lgkmcnt(0)")
    a("s_barrier")
    a(f"s_cmp_lg_u32 s{sW}, 0")
    a("s_cbranch_scc1 L_HOPE")
    a(f"v_and_b32 v12, 31, v{vLane}")
    a(f"v_lshrrev_b32 v13, 5, v{vLane}")
    a(f"v_lshlrev_b32 v14, 7, v12")
    a(f"v_lshl_add_u32 v14, v13, 6, v14")
    a(f"v_add_u32 v14, {L_S3}, v14")
    for k in range(4):
        a(f"ds_read_b128 {vr(16+4*k,4)}, v14 offset:{16*k}")
    a("s_waitcnt lgkmcnt(0)")
    for k in range(8):
        a(f"v_add_f32 v{16+k}, v{16+k}, v{24+k}")
    for k in range(4):
        a(f"v_add_f32 v{16+k}, v{16+k}, v{20+k}")
    a(f"v_add_f32 v16, v16, v18")
    a(f"v_add_f32 v17, v17, v19")
    a(f"v_add_f32 v16, v16, v17")
    a(f"v_mov_b32 v17, v16")
    a(f"v_permlane32_swap_b32 v16, v17")
    a(f"v_add_f32 v16, v16, v17")
    a(f"s_lshl_b32 s{sT0}, s{sC}, 11")
    a(f"s_lshl_b32 s{sT1}, s{sJ}, 7")
    a(f"s_add_u32 s{sT0}, s{sT0}, s{sT1}")
    a(f"s_add_u32 s{sT0}, s{sT0}, s{sYPL}")
    a(f"s_mov_b32 exec_hi, 0")
    a(f"buffer_store_dword v16, v{vL4}, {srd(SRD_WS)}, s{sT0} offen sc1")
    a(f"s_mov_b64 exec, -1")
    stamp(11, True)
    a("s_branch L_HOPE")

    a.label("L_S4")
    a(f"s_cmp_eq_u32 s{sIsFFN}, 0")
    a("s_cbranch_scc1 L_HOPE")
    Lw = a.newlabel("NOW")
    a(f"s_cmp_lg_u32 s{sLayer}, 0")
    a(f"s_cbranch_scc1 {Lw}")
    a("s_waitcnt vmcnt(0)")
    for cg in range(2):
        for kc in range(2):
            off = L_W1 + kc * 32 * 64 + cg * 32
            a(f"ds_read_b64_tr_b16 {vr(VWA+8*cg+4*kc,2)}, v{vTr64} offset:{off}")
            a(f"ds_read_b64_tr_b16 {vr(VWA+8*cg+4*kc+2,2)}, v{vTr64} offset:{off+256}")
    a(f"v_add_u32 v12, {L_W2}, v{vTr128}")
    for cg in range(4):
        a(f"ds_read_b64_tr_b16 {vr(VWB+4*cg,2)}, v12 offset:{cg*32}")
        a(f"ds_read_b64_tr_b16 {vr(VWB+4*cg+2,2)}, v12 offset:{cg*32+512}")
    a(f"v_lshlrev_b32 v{vB1}, 16, v{vB1}")
    a(f"v_lshlrev_b32 v{vXres}, 16, v{vXres}")
    a("s_waitcnt lgkmcnt(0)")
    Lx = a.newlabel("XOK")
    a(f"s_branch {Lx}")
    a.label(Lw)
    a(f"s_lshl_b32 s{sT0}, s{sW}, 8")
    a(f"s_add_u32 s{sT0}, s{sT0}, s{sYPL}")
    a(f"s_add_u32 s{sT0}, s{sT0}, {8*2048}")
    poll([f"buffer_load_dword v{vXres}, v{vL4}, {srd(SRD_WS)}, s{sT0} offen sc1"], [vXres], 15)
    a.label(Lx)
    a(f"s_lshl_b32 s{sT0}, s{sW}, 8")
    a(f"s_add_u32 s{sT0}, s{sT0}, s{sYPL}")
    lds_ = []
    for c in range(8):
        if c % 2 == 0:
            lds_.append(f"s_add_u32 s{sT1}, s{sT0}, {c*2048}")
        lds_.append(f"buffer_load_dword v{16+c}, v{vL4}, {srd(SRD_WS)}, s{sT1} offen offset:{(c%2)*2048} sc1")
    poll(lds_, list(range(16, 24)), 15)
    stamp(10, True)
    for k in range(4):
        a(f"v_add_f32 v{16+k}, v{16+k}, v{20+k}")
    a(f"v_add_f32 v16, v16, v18")
    a(f"v_add_f32 v17, v17, v19")
    a(f"v_add_f32 v16, v16, v17")
    bf16round(16)
    a(f"v_add_f32 v16, v16, v{vXres}")
    bf16round(16)
    a(f"s_lshl_b32 s{sT0}, s{sW}, 7")
    a(f"s_add_u32 s{sT0}, s{sT0}, {L_XT}")
    a(f"v_lshl_add_u32 v12, v{vLane}, 1, s{sT0}")
    a(f"ds_write_b16_d16_hi v12, v16")
    Lp = a.newlabel("NOX1")
    a(f"s_cmp_lg_u32 s{sF}, 0")
    a(f"s_cbranch_scc1 {Lp}")
    a(f"s_lshl_b32 s{sT0}, s{sW}, 8")
    a(f"s_add_u32 s{sT0}, s{sT0}, s{sFPL}")
    a(f"s_add_u32 s{sT0}, s{sT0}, {NF*2048}")
    a(f"buffer_store_dword v16, v{vL4}, {srd(SRD_WS)}, s{sT0} offen sc1")
    a.label(Lp)
    a("s_waitcnt lgkmcnt(0)")
    a(f"ds_read_b128 v[20:23], v{vXA}")
    a(f"ds_read_b128 v[24:27], v{vXA} offset:64")
    a("s_waitcnt lgkmcnt(0)")
    for cg in range(2):
        a(f"v_mfma_f32_16x16x32_bf16 {vr(VO+4*cg,4)}, {vr(VWA+8*cg,4)}, v[20:23], 0")
        a(f"v_mfma_f32_16x16x32_bf16 {vr(VO+4*cg,4)}, {vr(VWA+8*cg+4,4)}, v[24:27], {vr(VO+4*cg,4)}")
    a(f"v_mfma_f32_16x16x32_bf16 v[28:31], v[20:23], v[20:23], 0")
    a(f"v_mfma_f32_16x16x32_bf16 v[28:31], v[24:27], v[24:27], v[28:31]")
    a(f"s_lshl_b32 s{sT0}, s{sW}, 2")
    a(f"s_add_u32 s{sT0}, s{sT0}, {L_H}")
    a(f"v_lshl_add_u32 v12, v{vN}, 10, s{sT0}")
    a(f"v_lshl_add_u32 v12, v{vG}, 7, v12")
    a(f"s_lshl_b32 s{sT0}, s{sW}, 3")
    a(f"s_add_u32 s{sT0}, s{sT0}, {L_ST}")
    a(f"v_mov_b32 v13, s{sT0}")
    a(f"s_mov_b64 exec, s[{sMn0}:{sMn0+1}]")
    for cg in range(2):
        a(f"ds_write2_b32 v12, v{VO+4*cg}, v{VO+4*cg+1} offset0:{cg*128} offset1:{cg*128+8}")
        a(f"ds_write2_b32 v12, v{VO+4*cg+2}, v{VO+4*cg+3} offset0:{cg*128+16} offset1:{cg*128+24}")
    a(f"s_mov_b64 exec, 1")
    a(f"ds_write_b64 v13, v[28:29]")
    a(f"s_mov_b64 exec, -1")
    a("s_waitcnt lgkmcnt(0)")
    a("s_barrier")
    a(f"v_and_b32 v12, 7, v{vN}")
    a(f"v_lshl_add_u32 v14, v{vG}, 3, v12")
    a(f"v_lshrrev_b32 v13, 3, v{vN}")
    a(f"v_lshlrev_b32 v13, 4, v13")
    a(f"v_lshl_add_u32 v13, v14, 5, v13")
    a(f"v_add_u32 v13, {L_H}, v13")
    a(f"v_lshlrev_b32 v12, 3, v12")
    a(f"v_add_u32 v12, {L_ST}, v12")
    a(f"ds_read_b64 v[16:17], v12")
    a(f"ds_read_b128 v[20:23], v13")
    a(f"ds_read_b128 v[24:27], v13 offset:1024")
    a("s_waitcnt lgkmcnt(0)")
    for dpp in ("quad_perm:[1,0,3,2]", "quad_perm:[2,3,0,1]", "row_half_mirror"):
        a(f"v_add_f32_dpp v16, v16, v16 {dpp} row_mask:0xf bank_mask:0xf")
        a(f"v_add_f32_dpp v17, v17, v17 {dpp} row_mask:0xf bank_mask:0xf")
    a(f"v_add_f32 v20, v20, v21")
    a(f"v_add_f32 v22, v22, v23")
    a(f"v_add_f32 v24, v24, v25")
    a(f"v_add_f32 v26, v26, v27")
    a(f"v_add_f32 v20, v20, v22")
    a(f"v_add_f32 v24, v24, v26")
    a(f"v_add_f32_dpp v20, v20, v20 row_ror:8 row_mask:0xf bank_mask:0xf")
    a(f"v_add_f32_dpp v24, v24, v24 row_ror:8 row_mask:0xf bank_mask:0xf")
    ln_stats(16, 17)
    a(f"v_fma_f32 v20, -v17, v24, v20")
    a(f"v_mul_f32 v20, v16, v20")
    bf16round(20)
    a(f"v_add_f32 v20, v20, v{vB1}")
    bf16round(20)
    k0 = 0.7978845608028654
    k1 = 0.044715
    l2e = 1.4426950408889634
    a(f"v_mul_f32 v21, v20, v20")
    a(f"v_mov_b32 v22, {f32(-2*l2e*k0)}")
    a(f"v_fmac_f32 v22, {f32(-2*l2e*k0*k1)}, v21")
    a(f"v_mul_f32 v22, v22, v20")
    a(f"v_exp_f32 v22, v22")
    a(f"v_add_f32 v22, 1.0, v22")
    a(f"v_rcp_f32 v22, v22")
    a(f"v_mul_f32 v20, v20, v22")
    a(f"v_cvt_pk_bf16_f32 v20, v20, v20")
    a(f"s_lshl_b32 s{sT0}, s{sW}, 7")
    a(f"s_add_u32 s{sT0}, s{sT0}, {L_XT}")
    a(f"v_lshl_add_u32 v12, v14, 1, s{sT0}")
    a(f"ds_write_b16 v12, v20")
    a(f"v_lshl_add_u32 v12, v{vG}, 4, s{sT0}")
    a("s_waitcnt lgkmcnt(0)")
    a(f"ds_read_b128 v[20:23], v12")
    a("s_waitcnt lgkmcnt(0)")
    for cg in range(4):
        a(f"v_mfma_f32_16x16x32_bf16 {vr(VO+4*cg,4)}, v[20:23], {vr(VWB+4*cg,4)}, 0")
    a(f"s_lshl_b32 s{sT0}, s{sF}, 11")
    a(f"s_lshl_b32 s{sT1}, s{sW}, 8")
    a(f"s_add_u32 s{sT0}, s{sT0}, s{sT1}")
    a(f"s_add_u32 s{sT0}, s{sT0}, s{sFPL}")
    a(f"v_cndmask_b32_e64 v16, v{VO}, v{VO+4}, s[{sMg1}:{sMg1+1}]")
    a(f"v_cndmask_b32_e64 v16, v16, v{VO+8}, s[{sMg2}:{sMg2+1}]")
    a(f"v_cndmask_b32_e64 v16, v16, v{VO+12}, s[{sMg3}:{sMg3+1}]")
    a(f"buffer_store_dword v16, v{vL4}, {srd(SRD_WS)}, s{sT0} offen sc1")
    stamp(11, True)

    a.label("L_HOPE")
    Lgo = a.newlabel("GOE")
    a(f"s_cmp_eq_u32 s{sLayer}, 0")
    a(f"s_cbranch_scc1 {Lgo}")
    a(f"s_cmp_ge_u32 s{sU}, 8")
    a("s_cbranch_scc1 L_FIN")
    a.label(Lgo)
    a(f"s_lshl_b32 s{sT0}, s{sW}, 11")
    a(f"s_lshl_b32 s{sT1}, s{sS}, 8")
    a(f"s_add_u32 s{sT1}, s{sT1}, s{sFPL}")
    a(f"s_add_u32 s{sT0}, s{sT0}, s{sT1}")
    a(f"s_add_u32 s{sT1}, s{sT1}, {NF*2048}")
    a(f"s_add_u32 s{sT2}, s{sT0}, {40*2048}")
    a(f"s_cmp_lt_u32 s{sW}, 3")
    a(f"s_cselect_b32 s{sT2}, s{sT2}, s{sT0}")
    a(f"s_cselect_b32 s{sT3}, {f32(1.0)}, 0")
    lds_ = [f"buffer_load_dword v22, v{vL4}, {srd(SRD_WS)}, s{sT1} offen sc1",
            f"buffer_load_dword v21, v{vL4}, {srd(SRD_WS)}, s{sT2} offen sc1"]
    a(f"v_mov_b32 v12, v{vL4}")
    for i in range(1, 5):
        a(f"v_add_u32 v{23+i}, {i*8*2048}, v{vL4}")
    for i in range(5):
        lds_.append(f"buffer_load_dword v{16+i}, v{12 if i == 0 else 23+i}, {srd(SRD_WS)}, s{sT0} offen sc1")
    poll(lds_, list(range(16, 23)), 15)
    stamp(12, True)
    a(f"v_add_f32 v16, v16, v17")
    a(f"v_add_f32 v18, v18, v19")
    a(f"v_fmac_f32 v20, s{sT3}, v21")
    a(f"v_add_f32 v16, v16, v18")
    a(f"v_add_f32 v16, v16, v20")
    a(f"s_lshl_b32 s{sT0}, s{sW}, 2")
    a(f"s_add_u32 s{sT0}, s{sT0}, {L_E}")
    a(f"v_lshl_add_u32 v12, v{vLane}, 5, s{sT0}")
    a(f"ds_write_b32 v12, v16")
    a(f"v_lshlrev_b32 v12, 5, v{vLane}")
    a(f"v_add_u32 v12, {L_E}, v12")
    a("s_waitcnt lgkmcnt(0)")
    a("s_barrier")
    a(f"ds_read_b128 v[24:27], v12")
    a(f"ds_read_b128 v[28:31], v12 offset:16")
    a(f"v_lshlrev_b32 v13, 16, v{vB2}")
    a("s_waitcnt lgkmcnt(0)")
    for k in range(4):
        a(f"v_add_f32 v{24+k}, v{24+k}, v{28+k}")
    a(f"v_add_f32 v24, v24, v26")
    a(f"v_add_f32 v25, v25, v27")
    a(f"v_add_f32 v16, v24, v25")
    bf16round(16)
    a(f"v_add_f32 v16, v16, v13")
    bf16round(16)
    a(f"v_add_f32 v16, v16, v22")
    bf16round(16)
    a(f"s_cmp_lg_u32 s{sLayer}, 0")
    a("s_cbranch_scc1 L_OUT")
    a(f"s_lshl_b32 s{sT0}, s{sW}, 7")
    a(f"s_add_u32 s{sT0}, s{sT0}, {L_XT}")
    a(f"v_lshl_add_u32 v12, v{vLane}, 1, s{sT0}")
    a(f"ds_write_b16_d16_hi v12, v16")
    a("s_waitcnt lgkmcnt(0)")
    a(f"ds_read_b128 v[20:23], v{vXA}")
    a(f"ds_read_b128 v[24:27], v{vXA} offset:64")
    a("s_waitcnt lgkmcnt(0)")
    a(f"v_mfma_f32_16x16x32_bf16 {vr(VO,4)}, v[20:23], {vr(VWQ,4)}, 0")
    a(f"v_mfma_f32_16x16x32_bf16 {vr(VO,4)}, v[24:27], {vr(VWQ+4,4)}, {vr(VO,4)}")
    a(f"v_mfma_f32_16x16x32_bf16 v[28:31], v[20:23], v[20:23], 0")
    a(f"v_mfma_f32_16x16x32_bf16 v[28:31], v[24:27], v[24:27], v[28:31]")
    a(f"s_lshl_b32 s{sT0}, s{sW}, 6")
    a(f"s_add_u32 s{sT0}, s{sT0}, s{sOwn}")
    a(f"s_mov_b64 exec, s[{sM16}:{sM16+1}]")
    fast_store([f"buffer_store_dword v{VO}, v{vL4}, {srd(SRD_WS)}, s{sT0} offen offset:{QP_OFF[1]}"])
    a(f"s_mov_b64 exec, -1")
    Ln = a.newlabel("NOST")
    a(f"s_cmp_lg_u32 s{sW}, 1")
    a(f"s_cbranch_scc1 {Ln}")
    a(f"s_mov_b64 exec, 1")
    fast_store([f"buffer_store_dwordx2 v[28:29], v{vL4}, {srd(SRD_WS)}, s{sOwn} offen offset:{ST_OFF[1]}"])
    a(f"s_mov_b64 exec, -1")
    a(f"s_cmp_ge_u32 s{sU}, 8")
    a(f"s_cbranch_scc1 {Ln}")
    a(f"s_lshl_b32 s{sT0}, s{sS}, 8")
    a(f"s_add_u32 s{sT0}, s{sT0}, {G + YP_L + 8*2048}")
    a(f"buffer_store_dword v16, v{vL4}, {srd(SRD_WS)}, s{sT0} offen sc1")
    a.label(Ln)
    stamp(13, True)
    a(f"s_mov_b32 s{sLayer}, 1")
    a("s_branch L_LOOP")

    a.label("L_OUT")
    a(f"s_cmp_lg_u32 s{sW}, 0")
    a("s_cbranch_scc1 L_FIN")
    a(f"v_lshlrev_b32 v12, 1, v{vLane}")
    a(f"s_lshl_b32 s{sT0}, s{sS}, 7")
    a(f"buffer_store_short_d16_hi v16, v12, {srd(SRD_OUT)}, s{sT0} offen")
    stamp(13, True)
    a.label("L_FIN")
    if stamps:
        a(f"s_cmp_lg_u32 s{sW}, 0")
        a("s_cbranch_scc1 L_END")
        stamp(14, True)
        a(f"s_lshl_b32 s{sT0}, s2, 7")
        a(f"s_add_u32 s{sT0}, s{sT0}, {STAMP}")
        a(f"s_mov_b32 exec_hi, 0")
        a(f"buffer_store_dword v{vStamp}, v{vL4}, {srd(SRD_WS)}, s{sT0} offen")
    a.label("L_END")
    a("s_endpgm")
    a.raw('.section .rodata,"a"')
    a.raw(".p2align 6")
    a.raw(f".amdhsa_kernel {NAME}_kernel")
    a.raw("  .amdhsa_next_free_vgpr 256")
    a.raw("  .amdhsa_next_free_sgpr 102")
    a.raw("  .amdhsa_accum_offset 256")
    a.raw("  .amdhsa_group_segment_fixed_size 0")
    a.raw("  .amdhsa_kernarg_size 104")
    a.raw("  .amdhsa_user_sgpr_count 2")
    a.raw("  .amdhsa_user_sgpr_kernarg_segment_ptr 1")
    a.raw("  .amdhsa_system_sgpr_workgroup_id_x 1")
    a.raw(".end_amdhsa_kernel")
    return a.text()


if __name__ == "__main__":
    open("k1.s", "w").write(gen(False))
    open("k1s.s", "w").write(gen(True))
```

```python
import sys, struct
from emit import Asm

NAME = "interleave_layers__mha_block_cached__dense_activation_gelu__decode"
HEADER = open("cdna_kernels/" + NAME + ".s.ref").read().split("; Override launch")[0]


def f32(x):
    return "0x%08x" % struct.unpack("<I", struct.pack("<f", x))[0]


REC = 4096
QP_OFF = [0x000, 0x500]
ST_OFF = [0x200, 0x700]
CS_OFF = 0x280
OP_OFF = [0x800, 0xC00]
ML_OFF = [0xA00, 0xE00]
G = 0x100000
YP_L = 0x4800
FP0 = G + 0x9000
FP_L = 0x16000
NF = 43
STAMP = 0x8000000

L_WQ = 0x0000
L_WO = 0x4000
L_W1 = 0xC000
L_W2 = 0x14000
L_Q = 0x1C000
L_FLAG = 0x1C100
L_ONES = 0x1C180
L_M = 0x1C200
L_L = 0x1C240
L_O = 0x1C400
L_S3 = 0x1D400
L_XT = 0x1E400
L_H = 0x1E800
L_ST = 0x1F000
L_E = 0x1F100
LDS_BYTES = 0x20000

SRD_K, SRD_V, SRD_WQ, SRD_WO, SRD_W1, SRD_W2, SRD_WS, SRD_X, SRD_B1, SRD_B2, SRD_OUT, SRD_DBG = [32 + 4 * i for i in range(12)]
sC, sJ, sU, sH, sS, sW, sF, sIsS3, sIsFFN, sFast, sTO, sKV, sLayer = range(80, 93)
sT0, sT1, sT2, sT3 = 93, 94, 95, 96
sRecL = 97
sYPL = 98
sFPL = 99
sQPL = 100
sOPL = 101
sPermLo, sPermHi = 14, 15
sScale = 30
sGrp = 31
sM16 = 4
sMg1 = 6
sMg2 = 8
sMg3 = 10
sSave = 12
sClu = 16
sStampT = 18
sMn0 = 20
sOwn = 22


def srd(n):
    return f"s[{n}:{n+3}]"


vLane, vN, vG, vKo, vVo = 1, 2, 3, 4, 5
vTr64 = 6
vTr128 = 7
vTr256 = 8
vXA = 9
vL4 = 10
vStamp = 11
VK = 32
VS0, VS1, VTA = 96, 128, 160
VQB = 192
VSC = 208
VO = 192
VP = 224
VLA = 232
VONE = 236
VWQ = 240
vCS0, vCS1 = 248, 249
vB1, vB2, vXres = 250, 251, 252
VWA, VWB = 128, 144


def vr(b, n):
    return f"v[{b}:{b+n-1}]" if n > 1 else f"v{b}"


def gen(stamps=False, dbg=None):
    a = Asm()
    a.raw(HEADER.rstrip("\n"))
    a.raw(f"; @launch grid=(256,1,1) block=(512,1,1) lds={LDS_BYTES}")
    a.raw('.amdgcn_target "amdgcn-amd-amdhsa--gfx950"')
    a.raw(".text")
    a.raw(f".globl {NAME}_kernel")
    a.raw(".p2align 8")
    a.raw(f".type {NAME}_kernel,@function")
    a.raw(f"{NAME}_kernel:")

    def stamp(k, layered=False):
        if not stamps:
            return
        a(f"s_memrealtime s[{sStampT}:{sStampT+1}]")
        a("s_waitcnt lgkmcnt(0)")
        if layered:
            a(f"s_lshl_b32 s{sStampT+1}, s{sLayer}, 4")
            a(f"s_add_u32 s{sStampT+1}, s{sStampT+1}, {k}")
            a(f"s_mov_b32 m0, s{sStampT+1}")
            a(f"v_writelane_b32 v{vStamp}, s{sStampT}, m0")
        else:
            a(f"v_writelane_b32 v{vStamp}, s{sStampT}, {k}")

    def poll(loads, regs, tmp):
        L = a.newlabel("POLL")
        D = a.newlabel("PDONE")
        a.label(L)
        for ld in loads:
            a(ld)
        a("s_waitcnt vmcnt(0)")
        rs = list(regs)
        if len(rs) == 1:
            cur = rs[0]
        else:
            first = True
            cur = None
            i = 0
            if len(rs) >= 3:
                a(f"v_max3_u32 v{tmp}, v{rs[0]}, v{rs[1]}, v{rs[2]}")
                i = 3
            else:
                a(f"v_max_u32 v{tmp}, v{rs[0]}, v{rs[1]}")
                i = 2
            while i < len(rs):
                if i + 1 < len(rs):
                    a(f"v_max3_u32 v{tmp}, v{tmp}, v{rs[i]}, v{rs[i+1]}")
                    i += 2
                else:
                    a(f"v_max_u32 v{tmp}, v{tmp}, v{rs[i]}")
                    i += 1
            cur = tmp
        a(f"v_cmp_eq_u32 vcc, -1, v{cur}")
        a(f"s_cbranch_vccz {D}")
        a(f"s_add_u32 s{sTO}, s{sTO}, 1")
        a(f"s_cmp_lt_u32 s{sTO}, 40000")
        a(f"s_cbranch_scc1 {L}")
        a.label(D)

    def fast_store(instr):
        Ls = a.newlabel("SLOW")
        Le = a.newlabel("SEND")
        a(f"s_cmp_eq_u32 s{sFast}, 0")
        a(f"s_cbranch_scc1 {Ls}")
        for i in instr:
            a(i)
        a(f"s_branch {Le}")
        a.label(Ls)
        for i in instr:
            a(i + " sc1")
        a.label(Le)

    def bf16round(v, t=None):
        a(f"v_cvt_pk_bf16_f32 v{v}, v{v}, v{v}")
        a(f"v_lshlrev_b32 v{v}, 16, v{v}")

    a("s_cmp_ge_u32 s2, 256")
    a("s_cbranch_scc1 L_END")
    if stamps:
        a(f"s_memrealtime s[{sRecL+1}:{sRecL+2}]")
    a("s_load_dwordx8 s[4:11], s[0:1], 0")
    a("s_load_dwordx2 s[12:13], s[0:1], 32")
    a("s_load_dwordx8 s[16:23], s[0:1], 48")
    a("s_load_dwordx4 s[24:27], s[0:1], 80")
    a("s_load_dwordx2 s[28:29], s[0:1], 96")
    a(f"v_lshrrev_b32 v{vLane}, 6, v0")
    a(f"s_and_b32 s{sC}, s2, 7")
    a(f"v_readfirstlane_b32 s{sW}, v{vLane}")
    a(f"s_lshr_b32 s{sJ}, s2, 3")
    a(f"s_lshl_b32 s{sU}, s{sC}, 5")
    a(f"s_add_u32 s{sU}, s{sU}, s{sJ}")
    a(f"s_lshr_b32 s{sH}, s{sU}, 3")
    a(f"s_and_b32 s{sS}, s{sU}, 7")
    a(f"v_and_b32 v{vLane}, 63, v0")
    a(f"v_and_b32 v{vN}, 15, v0")
    a(f"v_bfe_u32 v{vG}, v0, 4, 2")
    a(f"v_and_b32 v12, 3, v{vN}")
    a(f"v_lshlrev_b32 v12, 10, v12")
    a(f"v_lshrrev_b32 v13, 2, v{vN}")
    a(f"v_lshl_add_u32 v12, v13, 8, v12")
    a(f"v_lshl_add_u32 v{vKo}, v{vG}, 4, v12")
    a(f"v_lshlrev_b32 v{vVo}, 4, v{vLane}")
    a(f"v_lshlrev_b32 v{vL4}, 2, v{vLane}")
    a(f"s_lshl_b32 s{sKV}, s{sU}, 17")
    a(f"s_lshl_b32 s{sT0}, s{sW}, 14")
    a(f"s_add_u32 s{sKV}, s{sKV}, s{sT0}")
    a(f"s_cmp_lt_u32 s{sJ}, 16")
    a(f"s_cselect_b32 s{sIsS3}, 1, 0")
    a(f"s_min_u32 s{sF}, s{sC}, 3")
    a(f"s_mul_i32 s{sT0}, s{sC}, 5")
    a(f"s_add_u32 s{sF}, s{sF}, s{sT0}")
    a(f"s_add_u32 s{sF}, s{sF}, s{sJ}")
    a(f"s_sub_u32 s{sF}, s{sF}, 16")
    a(f"s_cmp_lt_u32 s{sC}, 3")
    a(f"s_cselect_b32 s{sT0}, 6, 5")
    a(f"s_sub_u32 s{sT1}, s{sJ}, 16")
    a(f"s_cmp_lt_u32 s{sT1}, s{sT0}")
    a(f"s_cselect_b32 s{sIsFFN}, 1, 0")
    a(f"s_cselect_b32 s{sF}, s{sF}, 0")
    a(f"s_mov_b32 s{sTO}, 0")
    a(f"s_mov_b32 s{sLayer}, 0")
    a(f"s_mov_b32 s{sFast}, 0")
    a(f"v_mov_b32 v{vStamp}, 0")
    a("s_waitcnt lgkmcnt(0)")

    def mksrd(n, src, size):
        a(f"s_mov_b32 s{n}, s{src}")
        a(f"s_mov_b32 s{n+1}, s{src+1}")
        a(f"s_mov_b32 s{n+2}, {size}")
        a(f"s_mov_b32 s{n+3}, 0x20000")
    mksrd(SRD_K, 6, 0x2000000)
    mksrd(SRD_V, 8, 0x2000000)
    mksrd(SRD_WQ, 10, 0x400000)
    mksrd(SRD_WO, 12, 0x400000)
    mksrd(SRD_W1, 16, 512 * 2752)
    mksrd(SRD_W2, 20, 1376 * 1024)
    mksrd(SRD_WS, 28, 0x10000000)
    mksrd(SRD_X, 4, 1024)
    mksrd(SRD_B1, 18, 2752)
    mksrd(SRD_B2, 22, 1024)
    mksrd(SRD_OUT, 24, 1024)
    mksrd(SRD_DBG, 26, 256)
    a(f"s_cmp_eq_u32 s{sIsS3}, 1")
    a(f"s_cselect_b32 s{SRD_WO+2}, s{SRD_WO+2}, 0")
    a(f"s_cmp_eq_u32 s{sIsFFN}, 1")
    a(f"s_cselect_b32 s{SRD_W1+2}, s{SRD_W1+2}, 0")
    a(f"s_cselect_b32 s{SRD_W2+2}, s{SRD_W2+2}, 0")
    stamp(0)
    if stamps:
        a(f"v_writelane_b32 v{vStamp}, s{sRecL+1}, 15")
    a(f"s_mov_b32 s{sPermLo}, 0x05040100")
    a(f"s_mov_b32 s{sPermHi}, 0x07060302")
    a(f"s_mov_b32 s{sScale}, {f32(1.4426950408889634 / 128 ** 0.5)}")
    a(f"s_mov_b64 s[{sM16}:{sM16+1}], 0xffff")
    a(f"s_mov_b32 s{sMg1}, 0xffff0000")
    a(f"s_mov_b32 s{sMg1+1}, 0")
    a(f"s_mov_b32 s{sMg2}, 0")
    a(f"s_mov_b32 s{sMg2+1}, 0xffff")
    a(f"s_mov_b32 s{sMg3}, 0")
    a(f"s_mov_b32 s{sMg3+1}, 0xffff0000")
    a(f"s_mov_b32 s{sMn0}, 0x00030003")
    a(f"s_mov_b32 s{sMn0+1}, 0x00030003")
    a(f"s_lshl_b32 s{sGrp}, s{sH}, 15")
    a(f"s_lshl_b32 s{sClu}, s{sC}, 17")
    a(f"s_lshl_b32 s{sOwn}, s{sU}, 12")
    a(f"v_lshrrev_b32 v12, 2, v{vN}")
    a(f"v_lshl_add_u32 v12, v{vG}, 3, v12")
    a(f"v_and_b32 v13, 3, v{vN}")
    a(f"v_lshlrev_b32 v13, 3, v13")
    a(f"v_lshl_add_u32 v{vTr64}, v12, 6, v13")
    a(f"v_lshl_add_u32 v{vTr128}, v12, 7, v13")
    a(f"v_lshl_add_u32 v{vTr256}, v12, 8, v13")
    a(f"s_lshl_b32 s{sT0}, s{sW}, 12")
    a(f"v_add_u32 v{vTr64}, s{sT0}, v{vTr64}")
    a(f"v_add_u32 v{vTr128}, s{sT0}, v{vTr128}")
    for i in range(4):
        a(f"v_mov_b32 v{VONE+i}, 0x3f803f80")
    a(f"s_lshl_b32 s{sT0}, s{sW}, 7")
    a(f"s_add_u32 s{sT0}, s{sT0}, {L_XT}")
    a(f"v_lshl_add_u32 v12, v{vG}, 4, s{sT0}")
    a(f"v_mov_b32 v13, {L_ONES}")
    a(f"v_cmp_eq_u32 vcc, 1, v{vN}")
    a(f"v_cndmask_b32 v{vXA}, v12, v13, vcc")

    a(f"s_cmp_lg_u32 s{sW}, 0")
    a("s_cbranch_scc1 L_BULK")
    a("s_setprio 3")
    for i in range(4):
        a(f"v_mov_b32 v{12+i}, -1")
    for i in range(4):
        a(f"buffer_store_dwordx4 v[12:15], v{vVo}, {srd(SRD_WS)}, s{sOwn} offen offset:{i*1024} sc1")
    a(f"s_lshl_b32 s{sT0}, s{sU}, 10")
    a(f"s_add_u32 s{sT0}, s{sT0}, {G}")
    a(f"buffer_store_dwordx4 v[12:15], v{vVo}, {srd(SRD_WS)}, s{sT0} offen sc1")
    a(f"v_add_u32 v16, {L_ONES}, v{vVo}")
    a(f"s_mov_b64 exec, 0xff")
    a(f"ds_write_b128 v16, {vr(VONE,4)}")
    a(f"s_mov_b64 exec, -1")
    a(f"v_lshlrev_b32 v16, 13, v{vG}")
    a(f"v_lshl_add_u32 v16, v{vN}, 4, v16")
    a(f"s_lshl_b32 s{sT0}, s{sS}, 19")
    a(f"s_lshl_b32 s{sT1}, s{sH}, 8")
    a(f"s_add_u32 s{sT0}, s{sT0}, s{sT1}")
    for i in range(16):
        a(f"s_mov_b32 m0, {L_WQ + i*1024}")
        a(f"buffer_load_dwordx4 v16, {srd(SRD_WQ)}, s{sT0} offen nt lds")
        a(f"s_add_u32 s{sT0}, s{sT0}, {4*8192}")
    a(f"v_lshlrev_b32 v17, 4, v{vG}")
    a(f"s_lshl_b32 s{sT0}, s{sS}, 7")
    a(f"buffer_load_dwordx4 v[20:23], v17, {srd(SRD_X)}, s{sT0} offen")
    a(f"buffer_load_dwordx4 v[24:27], v17, {srd(SRD_X)}, s{sT0} offen offset:64")
    a(f"s_getreg_b32 s{sT2}, hwreg(HW_REG_XCC_ID, 0, 4)")
    a(f"s_or_b32 s{sT2}, s{sT2}, 0x10")
    a(f"v_mov_b32 v18, s{sT2}")
    a(f"v_mov_b32 v19, s{sU}")
    a("s_waitcnt vmcnt(0)")
    stamp(1)
    a(f"s_mov_b64 exec, 1")
    a(f"buffer_store_byte v18, v19, {srd(SRD_DBG)}, 0 offen sc1")
    a(f"s_mov_b64 exec, -1")
    a(f"v_cmp_eq_u32 vcc, 1, v{vN}")
    for i in range(8):
        a(f"v_cndmask_b32 v{20+i}, v{20+i}, v{VONE}, vcc")
    for cg in range(8):
        for kc in range(2):
            b = VK + 8 * cg + 4 * kc
            off = L_WQ + kc * 32 * 256 + cg * 32
            a(f"ds_read_b64_tr_b16 {vr(b,2)}, v{vTr256} offset:{off}")
            a(f"ds_read_b64_tr_b16 {vr(b+2,2)}, v{vTr256} offset:{off+1024}")
        if cg % 2 == 1:
            a("s_waitcnt lgkmcnt(0)")
    for cg in range(8):
        a(f"v_mfma_f32_16x16x32_bf16 {vr(VO+4*cg,4)}, v[20:23], {vr(VK+8*cg,4)}, 0")
        a(f"v_mfma_f32_16x16x32_bf16 {vr(VO+4*cg,4)}, v[24:27], {vr(VK+8*cg+4,4)}, {vr(VO+4*cg,4)}")
    a(f"v_mfma_f32_16x16x32_bf16 v[28:31], v[20:23], v[20:23], 0")
    a(f"v_mfma_f32_16x16x32_bf16 v[28:31], v[24:27], v[24:27], v[28:31]")
    a(f"s_mov_b64 exec, s[{sM16}:{sM16+1}]")
    for cg in range(8):
        a(f"buffer_store_dword v{VO+4*cg}, v{vL4}, {srd(SRD_WS)}, s{sOwn} offen offset:{QP_OFF[0]+cg*64} sc1")
        a(f"buffer_store_dword v{VO+4*cg+1}, v{vL4}, {srd(SRD_WS)}, s{sOwn} offen offset:{CS_OFF+cg*64} sc1")
    a(f"s_mov_b64 exec, 1")
    a(f"buffer_store_dwordx2 v[28:29], v{vL4}, {srd(SRD_WS)}, s{sOwn} offen offset:{ST_OFF[0]} sc1")
    a(f"s_mov_b64 exec, -1")
    stamp(2)

    a.label("L_BULK")
    for T in range(4):
        a(f"s_add_u32 s{sT0}, s{sKV}, {T*4096}")
        for j in range(4):
            a(f"buffer_load_dwordx4 {vr(VK+16*T+4*j,4)}, v{vKo}, {srd(SRD_K)}, s{sT0} offen offset:{64*j} nt")
    a(f"v_lshrrev_b32 v12, 2, v{vLane}")
    a(f"v_and_b32 v13, 3, v{vLane}")
    a(f"v_lshlrev_b32 v13, 4, v13")
    a(f"v_lshl_add_u32 v14, v12, 10, v13")
    a(f"s_movk_i32 s{sT0}, 2752")
    a(f"v_mad_u32_u24 v15, v12, s{sT0}, v13")
    a(f"v_lshrrev_b32 v12, 3, v{vLane}")
    a(f"v_and_b32 v13, 7, v{vLane}")
    a(f"v_lshlrev_b32 v13, 4, v13")
    a(f"v_lshl_add_u32 v16, v12, 10, v13")
    a(f"s_lshl_b32 s{sT0}, s{sC}, 19")
    a(f"s_lshl_b32 s{sT1}, s{sW}, 16")
    a(f"s_add_u32 s{sT0}, s{sT0}, s{sT1}")
    a(f"s_lshl_b32 s{sT1}, s{sJ}, 6")
    a(f"s_add_u32 s{sT0}, s{sT0}, s{sT1}")
    a(f"s_lshl_b32 s{sT2}, s{sW}, 12")
    a(f"s_add_u32 s{sT3}, s{sT2}, {L_WO}")
    for i in range(4):
        a(f"s_mov_b32 m0, s{sT3}")
        a(f"buffer_load_dwordx4 v14, {srd(SRD_WO)}, s{sT0} offen nt lds")
        a(f"s_add_u32 s{sT0}, s{sT0}, {16*1024}")
        a(f"s_add_u32 s{sT3}, s{sT3}, 1024")
    for b in range(2):
        for i in range(8):
            if i % 4 == 0:
                a(f"s_add_u32 s{sT0}, s{sKV}, {b*8192 + (i//4)*4096}")
            base = (VS0 if b == 0 else VS1) + 4 * i
            a(f"buffer_load_dwordx4 {vr(base,4)}, v{vVo}, {srd(SRD_V)}, s{sT0} offen offset:{(i%4)*1024} nt")
    a(f"s_mul_i32 s{sT0}, s{sW}, {64*2752}")
    a(f"s_lshl_b32 s{sT1}, s{sF}, 6")
    a(f"s_add_u32 s{sT0}, s{sT0}, s{sT1}")
    a(f"s_add_u32 s{sT3}, s{sT2}, {L_W1}")
    for i in range(4):
        a(f"s_mov_b32 m0, s{sT3}")
        a(f"buffer_load_dwordx4 v15, {srd(SRD_W1)}, s{sT0} offen nt lds")
        a(f"s_add_u32 s{sT0}, s{sT0}, {16*2752}")
        a(f"s_add_u32 s{sT3}, s{sT3}, 1024")
    a(f"s_lshl_b32 s{sT0}, s{sF}, 15")
    a(f"s_lshl_b32 s{sT1}, s{sW}, 7")
    a(f"s_add_u32 s{sT0}, s{sT0}, s{sT1}")
    a(f"s_add_u32 s{sT3}, s{sT2}, {L_W2}")
    for i in range(4):
        a(f"s_mov_b32 m0, s{sT3}")
        a(f"buffer_load_dwordx4 v16, {srd(SRD_W2)}, s{sT0} offen nt lds")
        a(f"s_add_u32 s{sT0}, s{sT0}, {8*1024}")
        a(f"s_add_u32 s{sT3}, s{sT3}, 1024")
    a(f"v_and_b32 v12, 7, v{vN}")
    a(f"v_lshl_add_u32 v12, v{vG}, 3, v12")
    a(f"v_lshlrev_b32 v12, 1, v12")
    a(f"s_lshl_b32 s{sT0}, s{sF}, 6")
    a(f"buffer_load_ushort v{vB1}, v12, {srd(SRD_B1)}, s{sT0} offen")
    a(f"v_lshlrev_b32 v13, 1, v{vLane}")
    a(f"s_lshl_b32 s{sT0}, s{sS}, 7")
    a(f"buffer_load_ushort v{vB2}, v13, {srd(SRD_B2)}, s{sT0} offen")
    a(f"s_lshl_b32 s{sT0}, s{sW}, 7")
    a(f"buffer_load_ushort v{vXres}, v13, {srd(SRD_X)}, s{sT0} offen")
    NAFTER = 4 + 4 + 3
    stamp(3)

    a(f"s_cmp_lg_u32 s{sW}, 0")
    a("s_cbranch_scc1 L_LOOP")
    Lf = a.newlabel("FLAG")
    Lfd = a.newlabel("FLAGD")
    a.label(Lf)
    a(f"buffer_load_dword v12, v{vL4}, {srd(SRD_DBG)}, 0 offen sc1")
    a("s_waitcnt vmcnt(0)")
    a(f"v_and_b32 v13, 0x10101010, v12")
    a(f"v_cmp_ne_u32 vcc, 0x10101010, v13")
    a(f"s_cbranch_vccz {Lfd}")
    a(f"s_add_u32 s{sTO}, s{sTO}, 1")
    a(f"s_cmp_lt_u32 s{sTO}, 40000")
    a(f"s_cbranch_scc1 {Lf}")
    a.label(Lfd)
    a(f"s_getreg_b32 s{sT2}, hwreg(HW_REG_XCC_ID, 0, 4)")
    a(f"s_or_b32 s{sT2}, s{sT2}, 0x10")
    a(f"s_mul_i32 s{sT2}, s{sT2}, 0x01010101")
    a(f"v_cmp_eq_u32 vcc, s{sT2}, v12")
    a(f"s_lshl_b32 s{sT0}, s{sC}, 3")
    a(f"s_lshr_b64 vcc, vcc, s{sT0}")
    a(f"s_and_b32 s{sT0}, vcc_lo, 0xff")
    a(f"s_cmp_eq_u32 s{sT0}, 0xff")
    a(f"s_cselect_b32 s{sT0}, 1, 0")
    a(f"v_mov_b32 v12, s{sT0}")
    a(f"v_mov_b32 v13, {L_FLAG}")
    a(f"ds_write_b32 v13, v12")
    a(f"v_lshlrev_b32 v12, 3, v{vLane}")
    lds_ = []
    for p in range(8):
        lds_.append(f"s_add_u32 s{sT0}, s{sGrp}, {p*REC}")
        lds_.append(f"buffer_load_dwordx2 {vr(VO+2*p,2)}, v12, {srd(SRD_WS)}, s{sT0} offen offset:{CS_OFF} sc1")
    poll(lds_, list(range(VO, VO + 16)), 13)
    a(f"v_add_f32 v{vCS0}, v{VO}, v{VO+2}")
    a(f"v_add_f32 v{vCS1}, v{VO+1}, v{VO+3}")
    for p in range(2, 8):
        a(f"v_add_f32 v{vCS0}, v{vCS0}, v{VO+2*p}")
        a(f"v_add_f32 v{vCS1}, v{vCS1}, v{VO+2*p+1}")
    stamp(4)

    a.label("L_LOOP")
    a(f"s_mul_i32 s{sQPL}, s{sLayer}, {QP_OFF[1]}")
    a(f"s_lshl_b32 s{sOPL}, s{sLayer}, 10")
    a(f"s_mul_i32 s{sYPL}, s{sLayer}, {YP_L}")
    a(f"s_add_u32 s{sYPL}, s{sYPL}, {G}")
    a(f"s_mul_i32 s{sFPL}, s{sLayer}, {FP_L}")
    a(f"s_add_u32 s{sFPL}, s{sFPL}, {FP0}")
    a(f"s_cmp_lg_u32 s{sW}, 0")
    a("s_cbranch_scc1 L_QBAR")
    a(f"v_lshlrev_b32 v12, 3, v{vLane}")
    a(f"v_and_b32 v14, 7, v{vLane}")
    a(f"v_lshlrev_b32 v14, 12, v14")
    a(f"s_add_u32 s{sT1}, s{sGrp}, s{sQPL}")
    lds_ = [f"buffer_load_dwordx2 v[16:17], v14, {srd(SRD_WS)}, s{sT1} offen offset:{ST_OFF[0]} sc1"]
    for p in range(8):
        lds_.append(f"s_add_u32 s{sT0}, s{sT1}, {p*REC}")
        lds_.append(f"buffer_load_dwordx2 {vr(VO+2*p,2)}, v12, {srd(SRD_WS)}, s{sT0} offen sc1")
    poll(lds_, [16, 17] + list(range(VO, VO + 16)), 13)
    stamp(5, True)
    for dpp in ("quad_perm:[1,0,3,2]", "quad_perm:[2,3,0,1]", "row_half_mirror"):
        a(f"v_add_f32_dpp v16, v16, v16 {dpp} row_mask:0xf bank_mask:0xf")
        a(f"v_add_f32_dpp v17, v17, v17 {dpp} row_mask:0xf bank_mask:0xf")
    a(f"v_add_f32 v18, v{VO}, v{VO+2}")
    a(f"v_add_f32 v19, v{VO+1}, v{VO+3}")
    for p in range(2, 8):
        a(f"v_add_f32 v18, v18, v{VO+2*p}")
        a(f"v_add_f32 v19, v19, v{VO+2*p+1}")

    def ln_stats(vss, vs):
        a(f"v_mul_f32 v{vs}, {f32(1/512)}, v{vs}")
        a(f"v_mul_f32 v{vss}, {f32(1/512)}, v{vss}")
        a(f"v_fma_f32 v{vss}, -v{vs}, v{vs}, v{vss}")
        a(f"v_max_f32 v{vss}, 0, v{vss}")
        a(f"v_add_f32 v{vss}, {f32(1e-5)}, v{vss}")
        a(f"v_rsq_f32 v{vss}, v{vss}")
    ln_stats(16, 17)
    a(f"v_fma_f32 v18, -v17, v{vCS0}, v18")
    a(f"v_fma_f32 v19, -v17, v{vCS1}, v19")
    a(f"v_mul_f32 v18, v16, v18")
    a(f"v_mul_f32 v19, v16, v19")
    a(f"v_cvt_pk_bf16_f32 v18, v18, v19")
    a(f"ds_write_b32 v{vL4}, v18 offset:{L_Q & 0xffff}" if L_Q < 65536 else f"v_add_u32 v13, {L_Q}, v{vL4}")
    if L_Q >= 65536:
        a(f"ds_write_b32 v13, v18")
    a("s_waitcnt lgkmcnt(0)")
    a.label("L_QBAR")
    a("s_barrier")
    stamp(6, True)
    a(f"v_lshlrev_b32 v12, 4, v{vG}")
    a(f"v_add_u32 v12, {L_Q}, v12")
    for j in range(4):
        a(f"ds_read_b128 {vr(VQB+4*j,4)}, v12 offset:{64*j}")
    a(f"v_mov_b32 v13, {L_FLAG}")
    a(f"ds_read_b32 v13, v13")
    a(f"s_waitcnt vmcnt({4+16+NAFTER}) lgkmcnt(0)")
    a(f"v_readfirstlane_b32 s{sFast}, v13")
    for T in range(4):
        for j in range(4):
            c = "0" if j == 0 else vr(VSC + 4 * T, 4)
            a(f"v_mfma_f32_16x16x32_bf16 {vr(VSC+4*T,4)}, {vr(VK+16*T+4*j,4)}, {vr(VQB+4*j,4)}, {c}")
    a(f"v_max3_f32 v12, v{VSC}, v{VSC+1}, v{VSC+2}")
    for i in range(3, 15, 2):
        a(f"v_max3_f32 v12, v12, v{VSC+i}, v{VSC+i+1}")
    a(f"v_max_f32 v12, v12, v{VSC+15}")
    a(f"v_mov_b32 v13, v12")
    a(f"v_permlane32_swap_b32 v12, v13")
    a(f"v_max_f32 v12, v12, v13")
    a(f"v_mov_b32 v13, v12")
    a(f"v_permlane16_swap_b32 v12, v13")
    a(f"v_max_f32 v12, v12, v13")
    a(f"v_mul_f32 v12, s{sScale}, v12")
    for i in range(16):
        a(f"v_fma_f32 v{VSC+i}, v{VSC+i}, s{sScale}, -v12")
    for i in range(16):
        a(f"v_exp_f32 v{VSC+i}, v{VSC+i}")
    for i in range(8):
        a(f"v_cvt_pk_bf16_f32 v{VP+i}, v{VSC+2*i}, v{VSC+2*i+1}")
    stamp(7, True)
    VT = [VTA, VS0]
    VSRC = [VS0, VS1]
    for b in range(2):
        Ls = a.newlabel("NOTR")
        a(f"s_cmp_lg_u32 s{sLayer}, 0")
        a(f"s_cbranch_scc1 {Ls}")
        for e2 in range(4):
            a(f"s_waitcnt vmcnt({NAFTER + (8 if b == 0 else 0) + 6 - 2*e2})")
            for d in range(4):
                r0 = VSRC[b] + 4 * (2 * e2) + d
                r1 = VSRC[b] + 4 * (2 * e2 + 1) + d
                a(f"v_perm_b32 v{VT[b] + 4*(2*d) + e2}, v{r1}, v{r0}, s{sPermLo}")
                a(f"v_perm_b32 v{VT[b] + 4*(2*d+1) + e2}, v{r1}, v{r0}, s{sPermHi}")
        a.label(Ls)
        for jj in range(8):
            c = "0" if b == 0 else vr(VO + 4 * jj, 4)
            a(f"v_mfma_f32_16x16x32_bf16 {vr(VO+4*jj,4)}, {vr(VP+4*b,4)}, {vr(VT[b]+4*jj,4)}, {c}")
        c = "0" if b == 0 else vr(VLA, 4)
        a(f"v_mfma_f32_16x16x32_bf16 {vr(VLA,4)}, {vr(VP+4*b,4)}, {vr(VONE,4)}, {c}")
    a(f"s_lshl_b32 s{sT0}, s{sW}, 9")
    a(f"s_add_u32 s{sT0}, s{sT0}, {L_O}")
    a(f"v_lshl_add_u32 v13, v{vN}, 5, s{sT0}")
    a(f"s_lshl_b32 s{sT0}, s{sW}, 2")
    a(f"s_add_u32 s{sT0}, s{sT0}, {L_M}")
    a(f"v_mov_b32 v14, s{sT0}")
    a(f"s_mov_b64 exec, s[{sM16}:{sM16+1}]")
    for k in range(4):
        a(f"ds_write2_b32 v13, v{VO+8*k}, v{VO+8*k+4} offset0:{2*k} offset1:{2*k+1}")
    a(f"ds_write2_b32 v14, v12, v{VLA} offset0:0 offset1:{(L_L-L_M)//4}")
    a(f"s_mov_b64 exec, -1")
    a("s_waitcnt lgkmcnt(0)")
    a("s_barrier")
    stamp(8, True)
    a(f"s_cmp_lg_u32 s{sW}, 0")
    a("s_cbranch_scc1 L_S2DONE")
    a(f"v_mov_b32 v12, {L_M}")
    a(f"ds_read_b128 v[16:19], v12")
    a(f"ds_read_b128 v[20:23], v12 offset:16")
    a(f"ds_read_b128 v[24:27], v12 offset:{L_L-L_M}")
    a(f"ds_read_b128 v[28:31], v12 offset:{L_L-L_M+16}")
    a(f"v_lshlrev_b32 v13, 3, v{vLane}")
    a(f"v_add_u32 v13, {L_O}, v13")
    for w in range(8):
        a(f"ds_read_b64 {vr(VO+2*w,2)}, v13 offset:{512*w}")
    a("s_waitcnt lgkmcnt(10)")
    a(f"v_max3_f32 v14, v16, v17, v18")
    a(f"v_max3_f32 v14, v14, v19, v20")
    a(f"v_max3_f32 v14, v14, v21, v22")
    a(f"v_max_f32 v14, v14, v23")
    for w in range(8):
        a(f"v_sub_f32 v{16+w}, v{16+w}, v14")
    for w in range(8):
        a(f"v_exp_f32 v{16+w}, v{16+w}")
    a("s_waitcnt lgkmcnt(0)")
    a(f"v_mul_f32 v15, v16, v24")
    a(f"v_mul_f32 v{VP}, v16, v{VO}")
    a(f"v_mul_f32 v{VP+1}, v16, v{VO+1}")
    for w in range(1, 8):
        a(f"v_fmac_f32 v15, v{16+w}, v{24+w}")
        a(f"v_fmac_f32 v{VP}, v{16+w}, v{VO+2*w}")
        a(f"v_fmac_f32 v{VP+1}, v{16+w}, v{VO+2*w+1}")
    a(f"v_cvt_pk_bf16_f32 v{VP+2}, v{VP}, v{VP+1}")
    a(f"v_lshlrev_b32 v{VP+3}, 16, v{VP+2}")
    a(f"v_and_b32 v{VP+4}, 0xffff0000, v{VP+2}")
    a(f"v_sub_f32 v{VP}, v{VP}, v{VP+3}")
    a(f"v_sub_f32 v{VP+1}, v{VP+1}, v{VP+4}")
    a(f"v_cvt_pk_bf16_f32 v{VP+3}, v{VP}, v{VP+1}")
    a(f"s_add_u32 s{sT0}, s{sOwn}, s{sOPL}")
    a(f"v_mov_b32 v13, 0")
    fast_store([
        f"buffer_store_dword v{VP+2}, v{vL4}, {srd(SRD_WS)}, s{sT0} offen offset:{OP_OFF[0]}",
        f"buffer_store_dword v{VP+3}, v{vL4}, {srd(SRD_WS)}, s{sT0} offen offset:{OP_OFF[0]+256}",
        f"buffer_store_dwordx2 v[14:15], v13, {srd(SRD_WS)}, s{sT0} offen offset:{ML_OFF[0]}",
    ])
    stamp(9, True)
    a.label("L_S2DONE")
    Lw = a.newlabel("NOW")
    a(f"s_cmp_lg_u32 s{sLayer}, 0")
    a(f"s_cbranch_scc1 {Lw}")
    a(f"s_lshl_b32 s{sT0}, s{sW}, 5")
    a(f"v_add_u32 v12, s{sT0}, v{vTr256}")
    for kc in range(2):
        off = L_WQ + kc * 32 * 256
        a(f"ds_read_b64_tr_b16 {vr(VWQ+4*kc,2)}, v12 offset:{off}")
        a(f"ds_read_b64_tr_b16 {vr(VWQ+4*kc+2,2)}, v12 offset:{off+1024}")
    for cg in range(2):
        for kc in range(2):
            off = L_WO + kc * 32 * 64 + cg * 32
            a(f"ds_read_b64_tr_b16 {vr(VWA+8*cg+4*kc,2)}, v{vTr64} offset:{off}")
            a(f"ds_read_b64_tr_b16 {vr(VWA+8*cg+4*kc+2,2)}, v{vTr64} offset:{off+256}")
    a("s_waitcnt lgkmcnt(0)")
    a.label(Lw)

    a(f"s_cmp_eq_u32 s{sIsS3}, 0")
    a("s_cbranch_scc1 L_S4")
    a(f"v_and_b32 v12, 7, v{vN}")
    a(f"v_lshlrev_b32 v12, 12, v12")
    a(f"v_lshrrev_b32 v13, 3, v{vN}")
    a(f"v_lshl_add_u32 v12, v13, 8, v12")
    a(f"v_lshl_add_u32 v12, v{vG}, 4, v12")
    a(f"s_lshr_b32 s{sT0}, s{sW}, 1")
    a(f"s_lshl_b32 s{sT0}, s{sT0}, 15")
    a(f"s_add_u32 s{sT0}, s{sT0}, s{sClu}")
    a(f"s_add_u32 s{sT0}, s{sT0}, s{sOPL}")
    a(f"s_and_b32 s{sT1}, s{sW}, 1")
    a(f"s_lshl_b32 s{sT1}, s{sT1}, 7")
    a(f"s_add_u32 s{sT1}, s{sT1}, s{sT0}")
    a(f"v_and_b32 v13, 1, v{vG}")
    a(f"v_lshlrev_b32 v13, 2, v13")
    a(f"v_and_or_b32 v13, v{vLane}, 3, v13")
    a(f"v_xor_b32 v14, 4, v13")
    a(f"v_lshlrev_b32 v13, 12, v13")
    a(f"v_lshlrev_b32 v14, 12, v14")
    poll([
        f"buffer_load_dwordx2 v[16:17], v13, {srd(SRD_WS)}, s{sT0} offen offset:{ML_OFF[0]} sc1",
        f"buffer_load_dwordx2 v[18:19], v14, {srd(SRD_WS)}, s{sT0} offen offset:{ML_OFF[0]} sc1",
        f"buffer_load_dwordx4 v[20:23], v12, {srd(SRD_WS)}, s{sT1} offen offset:{OP_OFF[0]} sc1",
        f"buffer_load_dwordx4 v[24:27], v12, {srd(SRD_WS)}, s{sT1} offen offset:{OP_OFF[0]+64} sc1",
    ], list(range(16, 28)), 15)
    stamp(10, True)
    for cg in range(2):
        a(f"v_mfma_f32_16x16x32_bf16 {vr(VO+4*cg,4)}, v[20:23], {vr(VWA+8*cg,4)}, 0")
        a(f"v_mfma_f32_16x16x32_bf16 {vr(VO+4*cg,4)}, v[24:27], {vr(VWA+8*cg+4,4)}, {vr(VO+4*cg,4)}")
    a(f"v_max_f32 v28, v16, v18")
    a(f"v_max_f32_dpp v28, v28, v28 quad_perm:[1,0,3,2] row_mask:0xf bank_mask:0xf")
    a(f"v_max_f32_dpp v28, v28, v28 quad_perm:[2,3,0,1] row_mask:0xf bank_mask:0xf")
    a(f"v_sub_f32 v16, v16, v28")
    a(f"v_sub_f32 v18, v18, v28")
    a(f"v_exp_f32 v16, v16")
    a(f"v_exp_f32 v18, v18")
    a(f"v_mul_f32 v29, v16, v17")
    a(f"v_fmac_f32 v29, v18, v19")
    a(f"v_add_f32_dpp v29, v29, v29 quad_perm:[1,0,3,2] row_mask:0xf bank_mask:0xf")
    a(f"v_add_f32_dpp v29, v29, v29 quad_perm:[2,3,0,1] row_mask:0xf bank_mask:0xf")
    a(f"v_rcp_f32 v29, v29")
    a(f"v_mul_f32 v16, v16, v29")
    for cg in range(2):
        a(f"v_mul_f32_dpp v{30+cg}, v16, v{VO+4*cg} quad_perm:[0,0,0,0] row_mask:0xf bank_mask:0xf")
        for r in range(1, 4):
            a(f"v_fmac_f32_dpp v{30+cg}, v16, v{VO+4*cg+r} quad_perm:[{r},{r},{r},{r}] row_mask:0xf bank_mask:0xf")
    a(f"s_lshl_b32 s{sT0}, s{sW}, 4")
    a(f"s_add_u32 s{sT0}, s{sT0}, {L_S3}")
    a(f"v_lshl_add_u32 v12, v{vN}, 7, s{sT0}")
    a(f"v_lshl_add_u32 v12, v{vG}, 2, v12")
    a(f"ds_write_b32 v12, v30")
    a(f"ds_write_b32 v12, v31 offset:2048")
    a("s_waitcnt lgkmcnt(0)")
    a("s_barrier")
    a(f"s_cmp_lg_u32 s{sW}, 0")
    a("s_cbranch_scc1 L_HOPE")
    a(f"v_and_b32 v12, 31, v{vLane}")
    a(f"v_lshrrev_b32 v13, 5, v{vLane}")
    a(f"v_lshlrev_b32 v14, 7, v12")
    a(f"v_lshl_add_u32 v14, v13, 6, v14")
    a(f"v_add_u32 v14, {L_S3}, v14")
    for k in range(4):
        a(f"ds_read_b128 {vr(16+4*k,4)}, v14 offset:{16*k}")
    a("s_waitcnt lgkmcnt(0)")
    for k in range(8):
        a(f"v_add_f32 v{16+k}, v{16+k}, v{24+k}")
    for k in range(4):
        a(f"v_add_f32 v{16+k}, v{16+k}, v{20+k}")
    a(f"v_add_f32 v16, v16, v18")
    a(f"v_add_f32 v17, v17, v19")
    a(f"v_add_f32 v16, v16, v17")
    a(f"v_mov_b32 v17, v16")
    a(f"v_permlane32_swap_b32 v16, v17")
    a(f"v_add_f32 v16, v16, v17")
    a(f"s_lshl_b32 s{sT0}, s{sC}, 11")
    a(f"s_lshl_b32 s{sT1}, s{sJ}, 7")
    a(f"s_add_u32 s{sT0}, s{sT0}, s{sT1}")
    a(f"s_add_u32 s{sT0}, s{sT0}, s{sYPL}")
    a(f"s_mov_b32 exec_hi, 0")
    a(f"buffer_store_dword v16, v{vL4}, {srd(SRD_WS)}, s{sT0} offen sc1")
    a(f"s_mov_b64 exec, -1")
    stamp(11, True)
    a("s_branch L_HOPE")

    a.label("L_S4")
    a(f"s_cmp_eq_u32 s{sIsFFN}, 0")
    a("s_cbranch_scc1 L_HOPE")
    Lw = a.newlabel("NOW")
    a(f"s_cmp_lg_u32 s{sLayer}, 0")
    a(f"s_cbranch_scc1 {Lw}")
    a("s_waitcnt vmcnt(0)")
    for cg in range(2):
        for kc in range(2):
            off = L_W1 + kc * 32 * 64 + cg * 32
            a(f"ds_read_b64_tr_b16 {vr(VWA+8*cg+4*kc,2)}, v{vTr64} offset:{off}")
            a(f"ds_read_b64_tr_b16 {vr(VWA+8*cg+4*kc+2,2)}, v{vTr64} offset:{off+256}")
    a(f"v_add_u32 v12, {L_W2}, v{vTr128}")
    for cg in range(4):
        a(f"ds_read_b64_tr_b16 {vr(VWB+4*cg,2)}, v12 offset:{cg*32}")
        a(f"ds_read_b64_tr_b16 {vr(VWB+4*cg+2,2)}, v12 offset:{cg*32+512}")
    a(f"v_lshlrev_b32 v{vB1}, 16, v{vB1}")
    a(f"v_lshlrev_b32 v{vXres}, 16, v{vXres}")
    a("s_waitcnt lgkmcnt(0)")
    Lx = a.newlabel("XOK")
    a(f"s_branch {Lx}")
    a.label(Lw)
    a(f"s_lshl_b32 s{sT0}, s{sW}, 8")
    a(f"s_add_u32 s{sT0}, s{sT0}, s{sYPL}")
    a(f"s_add_u32 s{sT0}, s{sT0}, {8*2048}")
    poll([f"buffer_load_dword v{vXres}, v{vL4}, {srd(SRD_WS)}, s{sT0} offen sc1"], [vXres], 15)
    a.label(Lx)
    a(f"s_lshl_b32 s{sT0}, s{sW}, 8")
    a(f"s_add_u32 s{sT0}, s{sT0}, s{sYPL}")
    lds_ = []
    for c in range(8):
        if c % 2 == 0:
            lds_.append(f"s_add_u32 s{sT1}, s{sT0}, {c*2048}")
        lds_.append(f"buffer_load_dword v{16+c}, v{vL4}, {srd(SRD_WS)}, s{sT1} offen offset:{(c%2)*2048} sc1")
    poll(lds_, list(range(16, 24)), 15)
    stamp(10, True)
    for k in range(4):
        a(f"v_add_f32 v{16+k}, v{16+k}, v{20+k}")
    a(f"v_add_f32 v16, v16, v18")
    a(f"v_add_f32 v17, v17, v19")
    a(f"v_add_f32 v16, v16, v17")
    bf16round(16)
    a(f"v_add_f32 v16, v16, v{vXres}")
    bf16round(16)
    a(f"s_lshl_b32 s{sT0}, s{sW}, 7")
    a(f"s_add_u32 s{sT0}, s{sT0}, {L_XT}")
    a(f"v_lshl_add_u32 v12, v{vLane}, 1, s{sT0}")
    a(f"ds_write_b16_d16_hi v12, v16")
    Lp = a.newlabel("NOX1")
    a(f"s_cmp_lg_u32 s{sF}, 0")
    a(f"s_cbranch_scc1 {Lp}")
    a(f"s_lshl_b32 s{sT0}, s{sW}, 8")
    a(f"s_add_u32 s{sT0}, s{sT0}, s{sFPL}")
    a(f"s_add_u32 s{sT0}, s{sT0}, {NF*2048}")
    a(f"buffer_store_dword v16, v{vL4}, {srd(SRD_WS)}, s{sT0} offen sc1")
    a.label(Lp)
    a("s_waitcnt lgkmcnt(0)")
    a(f"ds_read_b128 v[20:23], v{vXA}")
    a(f"ds_read_b128 v[24:27], v{vXA} offset:64")
    a("s_waitcnt lgkmcnt(0)")
    for cg in range(2):
        a(f"v_mfma_f32_16x16x32_bf16 {vr(VO+4*cg,4)}, {vr(VWA+8*cg,4)}, v[20:23], 0")
        a(f"v_mfma_f32_16x16x32_bf16 {vr(VO+4*cg,4)}, {vr(VWA+8*cg+4,4)}, v[24:27], {vr(VO+4*cg,4)}")
    a(f"v_mfma_f32_16x16x32_bf16 v[28:31], v[20:23], v[20:23], 0")
    a(f"v_mfma_f32_16x16x32_bf16 v[28:31], v[24:27], v[24:27], v[28:31]")
    a(f"s_lshl_b32 s{sT0}, s{sW}, 2")
    a(f"s_add_u32 s{sT0}, s{sT0}, {L_H}")
    a(f"v_lshl_add_u32 v12, v{vN}, 10, s{sT0}")
    a(f"v_lshl_add_u32 v12, v{vG}, 7, v12")
    a(f"s_lshl_b32 s{sT0}, s{sW}, 3")
    a(f"s_add_u32 s{sT0}, s{sT0}, {L_ST}")
    a(f"v_mov_b32 v13, s{sT0}")
    a(f"s_mov_b64 exec, s[{sMn0}:{sMn0+1}]")
    for cg in range(2):
        a(f"ds_write2_b32 v12, v{VO+4*cg}, v{VO+4*cg+1} offset0:{cg*128} offset1:{cg*128+8}")
        a(f"ds_write2_b32 v12, v{VO+4*cg+2}, v{VO+4*cg+3} offset0:{cg*128+16} offset1:{cg*128+24}")
    a(f"s_mov_b64 exec, 1")
    a(f"ds_write_b64 v13, v[28:29]")
    a(f"s_mov_b64 exec, -1")
    a("s_waitcnt lgkmcnt(0)")
    a("s_barrier")
    a(f"v_and_b32 v12, 7, v{vN}")
    a(f"v_lshl_add_u32 v14, v{vG}, 3, v12")
    a(f"v_lshrrev_b32 v13, 3, v{vN}")
    a(f"v_lshlrev_b32 v13, 4, v13")
    a(f"v_lshl_add_u32 v13, v14, 5, v13")
    a(f"v_add_u32 v13, {L_H}, v13")
    a(f"v_lshlrev_b32 v12, 3, v12")
    a(f"v_add_u32 v12, {L_ST}, v12")
    a(f"ds_read_b64 v[16:17], v12")
    a(f"ds_read_b128 v[20:23], v13")
    a(f"ds_read_b128 v[24:27], v13 offset:1024")
    a("s_waitcnt lgkmcnt(0)")
    for dpp in ("quad_perm:[1,0,3,2]", "quad_perm:[2,3,0,1]", "row_half_mirror"):
        a(f"v_add_f32_dpp v16, v16, v16 {dpp} row_mask:0xf bank_mask:0xf")
        a(f"v_add_f32_dpp v17, v17, v17 {dpp} row_mask:0xf bank_mask:0xf")
    a(f"v_add_f32 v20, v20, v21")
    a(f"v_add_f32 v22, v22, v23")
    a(f"v_add_f32 v24, v24, v25")
    a(f"v_add_f32 v26, v26, v27")
    a(f"v_add_f32 v20, v20, v22")
    a(f"v_add_f32 v24, v24, v26")
    a(f"v_add_f32_dpp v20, v20, v20 row_ror:8 row_mask:0xf bank_mask:0xf")
    a(f"v_add_f32_dpp v24, v24, v24 row_ror:8 row_mask:0xf bank_mask:0xf")
    ln_stats(16, 17)
    a(f"v_fma_f32 v20, -v17, v24, v20")
    a(f"v_mul_f32 v20, v16, v20")
    bf16round(20)
    a(f"v_add_f32 v20, v20, v{vB1}")
    bf16round(20)
    k0 = 0.7978845608028654
    k1 = 0.044715
    l2e = 1.4426950408889634
    a(f"v_mul_f32 v21, v20, v20")
    a(f"v_mov_b32 v22, {f32(-2*l2e*k0)}")
    a(f"v_fmac_f32 v22, {f32(-2*l2e*k0*k1)}, v21")
    a(f"v_mul_f32 v22, v22, v20")
    a(f"v_exp_f32 v22, v22")
    a(f"v_add_f32 v22, 1.0, v22")
    a(f"v_rcp_f32 v22, v22")
    a(f"v_mul_f32 v20, v20, v22")
    a(f"v_cvt_pk_bf16_f32 v20, v20, v20")
    a(f"s_lshl_b32 s{sT0}, s{sW}, 7")
    a(f"s_add_u32 s{sT0}, s{sT0}, {L_XT}")
    a(f"v_lshl_add_u32 v12, v14, 1, s{sT0}")
    a(f"ds_write_b16 v12, v20")
    a(f"v_lshl_add_u32 v12, v{vG}, 4, s{sT0}")
    a("s_waitcnt lgkmcnt(0)")
    a(f"ds_read_b128 v[20:23], v12")
    a("s_waitcnt lgkmcnt(0)")
    for cg in range(4):
        a(f"v_mfma_f32_16x16x32_bf16 {vr(VO+4*cg,4)}, v[20:23], {vr(VWB+4*cg,4)}, 0")
    a(f"s_lshl_b32 s{sT0}, s{sF}, 11")
    a(f"s_lshl_b32 s{sT1}, s{sW}, 8")
    a(f"s_add_u32 s{sT0}, s{sT0}, s{sT1}")
    a(f"s_add_u32 s{sT0}, s{sT0}, s{sFPL}")
    a(f"v_cndmask_b32_e64 v16, v{VO}, v{VO+4}, s[{sMg1}:{sMg1+1}]")
    a(f"v_cndmask_b32_e64 v16, v16, v{VO+8}, s[{sMg2}:{sMg2+1}]")
    a(f"v_cndmask_b32_e64 v16, v16, v{VO+12}, s[{sMg3}:{sMg3+1}]")
    a(f"buffer_store_dword v16, v{vL4}, {srd(SRD_WS)}, s{sT0} offen sc1")
    stamp(11, True)

    a.label("L_HOPE")
    Lgo = a.newlabel("GOE")
    a(f"s_cmp_eq_u32 s{sLayer}, 0")
    a(f"s_cbranch_scc1 {Lgo}")
    a(f"s_cmp_ge_u32 s{sU}, 8")
    a("s_cbranch_scc1 L_FIN")
    a.label(Lgo)
    a(f"s_lshl_b32 s{sT0}, s{sW}, 11")
    a(f"s_lshl_b32 s{sT1}, s{sS}, 8")
    a(f"s_add_u32 s{sT1}, s{sT1}, s{sFPL}")
    a(f"s_add_u32 s{sT0}, s{sT0}, s{sT1}")
    a(f"s_add_u32 s{sT1}, s{sT1}, {NF*2048}")
    a(f"s_add_u32 s{sT2}, s{sT0}, {40*2048}")
    a(f"s_cmp_lt_u32 s{sW}, 3")
    a(f"s_cselect_b32 s{sT2}, s{sT2}, s{sT0}")
    a(f"s_cselect_b32 s{sT3}, {f32(1.0)}, 0")
    lds_ = [f"buffer_load_dword v22, v{vL4}, {srd(SRD_WS)}, s{sT1} offen sc1",
            f"buffer_load_dword v21, v{vL4}, {srd(SRD_WS)}, s{sT2} offen sc1"]
    a(f"v_mov_b32 v12, v{vL4}")
    for i in range(1, 5):
        a(f"v_add_u32 v{23+i}, {i*8*2048}, v{vL4}")
    for i in range(5):
        lds_.append(f"buffer_load_dword v{16+i}, v{12 if i == 0 else 23+i}, {srd(SRD_WS)}, s{sT0} offen sc1")
    poll(lds_, list(range(16, 23)), 15)
    stamp(12, True)
    a(f"v_add_f32 v16, v16, v17")
    a(f"v_add_f32 v18, v18, v19")
    a(f"v_fmac_f32 v20, s{sT3}, v21")
    a(f"v_add_f32 v16, v16, v18")
    a(f"v_add_f32 v16, v16, v20")
    a(f"s_lshl_b32 s{sT0}, s{sW}, 2")
    a(f"s_add_u32 s{sT0}, s{sT0}, {L_E}")
    a(f"v_lshl_add_u32 v12, v{vLane}, 5, s{sT0}")
    a(f"ds_write_b32 v12, v16")
    a(f"v_lshlrev_b32 v12, 5, v{vLane}")
    a(f"v_add_u32 v12, {L_E}, v12")
    a("s_waitcnt lgkmcnt(0)")
    a("s_barrier")
    a(f"ds_read_b128 v[24:27], v12")
    a(f"ds_read_b128 v[28:31], v12 offset:16")
    a(f"v_lshlrev_b32 v13, 16, v{vB2}")
    a("s_waitcnt lgkmcnt(0)")
    for k in range(4):
        a(f"v_add_f32 v{24+k}, v{24+k}, v{28+k}")
    a(f"v_add_f32 v24, v24, v26")
    a(f"v_add_f32 v25, v25, v27")
    a(f"v_add_f32 v16, v24, v25")
    bf16round(16)
    a(f"v_add_f32 v16, v16, v13")
    bf16round(16)
    a(f"v_add_f32 v16, v16, v22")
    bf16round(16)
    a(f"s_cmp_lg_u32 s{sLayer}, 0")
    a("s_cbranch_scc1 L_OUT")
    a(f"s_lshl_b32 s{sT0}, s{sW}, 7")
    a(f"s_add_u32 s{sT0}, s{sT0}, {L_XT}")
    a(f"v_lshl_add_u32 v12, v{vLane}, 1, s{sT0}")
    a(f"ds_write_b16_d16_hi v12, v16")
    a("s_waitcnt lgkmcnt(0)")
    a(f"ds_read_b128 v[20:23], v{vXA}")
    a(f"ds_read_b128 v[24:27], v{vXA} offset:64")
    a("s_waitcnt lgkmcnt(0)")
    a(f"v_mfma_f32_16x16x32_bf16 {vr(VO,4)}, v[20:23], {vr(VWQ,4)}, 0")
    a(f"v_mfma_f32_16x16x32_bf16 {vr(VO,4)}, v[24:27], {vr(VWQ+4,4)}, {vr(VO,4)}")
    a(f"v_mfma_f32_16x16x32_bf16 v[28:31], v[20:23], v[20:23], 0")
    a(f"v_mfma_f32_16x16x32_bf16 v[28:31], v[24:27], v[24:27], v[28:31]")
    a(f"s_lshl_b32 s{sT0}, s{sW}, 6")
    a(f"s_add_u32 s{sT0}, s{sT0}, s{sOwn}")
    a(f"s_mov_b64 exec, s[{sM16}:{sM16+1}]")
    fast_store([f"buffer_store_dword v{VO}, v{vL4}, {srd(SRD_WS)}, s{sT0} offen offset:{QP_OFF[1]}"])
    a(f"s_mov_b64 exec, -1")
    Ln = a.newlabel("NOST")
    a(f"s_cmp_lg_u32 s{sW}, 1")
    a(f"s_cbranch_scc1 {Ln}")
    a(f"s_mov_b64 exec, 1")
    fast_store([f"buffer_store_dwordx2 v[28:29], v{vL4}, {srd(SRD_WS)}, s{sOwn} offen offset:{ST_OFF[1]}"])
    a(f"s_mov_b64 exec, -1")
    a(f"s_cmp_ge_u32 s{sU}, 8")
    a(f"s_cbranch_scc1 {Ln}")
    a(f"s_lshl_b32 s{sT0}, s{sS}, 8")
    a(f"s_add_u32 s{sT0}, s{sT0}, {G + YP_L + 8*2048}")
    a(f"buffer_store_dword v16, v{vL4}, {srd(SRD_WS)}, s{sT0} offen sc1")
    a.label(Ln)
    stamp(13, True)
    a(f"s_mov_b32 s{sLayer}, 1")
    a("s_branch L_LOOP")

    a.label("L_OUT")
    a(f"s_cmp_lg_u32 s{sW}, 0")
    a("s_cbranch_scc1 L_FIN")
    a(f"v_lshlrev_b32 v12, 1, v{vLane}")
    a(f"s_lshl_b32 s{sT0}, s{sS}, 7")
    a(f"buffer_store_short_d16_hi v16, v12, {srd(SRD_OUT)}, s{sT0} offen")
    stamp(13, True)
    a.label("L_FIN")
    if stamps:
        a(f"s_cmp_lg_u32 s{sW}, 0")
        a("s_cbranch_scc1 L_END")
        stamp(14, True)
        a(f"s_lshl_b32 s{sT0}, s2, 7")
        a(f"s_add_u32 s{sT0}, s{sT0}, {STAMP}")
        a(f"s_mov_b32 exec_hi, 0")
        a(f"buffer_store_dword v{vStamp}, v{vL4}, {srd(SRD_WS)}, s{sT0} offen")
        if dbg is not None:
            a(f"s_cmp_lg_u32 s{sU}, 0")
            a("s_cbranch_scc1 L_END")
            a(f"v_readlane_b32 s{sT0}, v{vStamp}, 15")
            a(f"v_subrev_u32 v12, s{sT0}, v{vStamp}")
            a(f"v_subrev_u32 v13, {dbg*64}, v{vL4}")
            a(f"buffer_store_dword v12, v13, {srd(SRD_DBG)}, 0 offen sc1")
    a.label("L_END")
    a("s_endpgm")
    a.raw('.section .rodata,"a"')
    a.raw(".p2align 6")
    a.raw(f".amdhsa_kernel {NAME}_kernel")
    a.raw("  .amdhsa_next_free_vgpr 256")
    a.raw("  .amdhsa_next_free_sgpr 102")
    a.raw("  .amdhsa_accum_offset 256")
    a.raw("  .amdhsa_group_segment_fixed_size 0")
    a.raw("  .amdhsa_kernarg_size 104")
    a.raw("  .amdhsa_user_sgpr_count 2")
    a.raw("  .amdhsa_user_sgpr_kernarg_segment_ptr 1")
    a.raw("  .amdhsa_system_sgpr_workgroup_id_x 1")
    a.raw(".end_amdhsa_kernel")
    return a.text()


if __name__ == "__main__":
    open("k1.s", "w").write(gen(False))
    open("k1s.s", "w").write(gen(True))
    open("k1d0.s", "w").write(gen(True, 0))
    open("k1d1.s", "w").write(gen(True, 1))
```

```python
import sys, struct
from emit import Asm

NAME = "interleave_layers__mha_block_cached__dense_activation_gelu__decode"
HEADER = open("cdna_kernels/" + NAME + ".s.ref").read().split("; Override launch")[0]


def f32(x):
    return "0x%08x" % struct.unpack("<I", struct.pack("<f", x))[0]


QPB = 0x00000
CSB = 0x20000
G = 0x40000
OPB = G
STB = G + 0x20000
MLB = G + 0x20800
CNB = G + 0x21000
YPB = G + 0x22000
FP0 = G + 0x26800
assert FP0 + 44 * 2048 <= G + 0x40000
FLB = 0x80000
EPB = 0x89000
QGB = 0xC0000
NF = 43
STAMP = 0x8000000

L_Q = 0x0000
L_FLAG = 0x0100
L_ACK = 0x0110
L_ONES = 0x0180
L_M = 0x0200
L_L = 0x0240
L_O = 0x0400
L_S3 = 0x1400
L_XT = 0x2400
L_H = 0x2800
L_ST = 0x3000
L_E = 0x3100
L_WQ = 0x4000
L_WA = 0x8000
L_W2 = 0x10000
LDS_BYTES = 0x18000

SRD_K, SRD_V, SRD_WQ, SRD_WO, SRD_W1, SRD_W2, SRD_WS, SRD_X, SRD_B1, SRD_B2, SRD_OUT, SRD_DBG = [32 + 4 * i for i in range(12)]
sC, sJ, sU, sH, sS, sW, sF, sIsS3, sIsFFN, sFast, sTO, sKV, sLayer = range(80, 93)
sT0, sT1, sT2, sT3 = 93, 94, 95, 96
sMask = 97
sBits = 98
sT4 = 100
sEp = 28
sPermLo, sPermHi = 14, 15
sScale = 30
sM16 = 4
sMg1 = 6
sMg2 = 8
sMg3 = 10
sPC = 12
sStampT = 18
sMn0 = 20
sT5, sT6, sT7 = 22, 23, 24
sFirst = 26


def srd(n):
    return f"s[{n}:{n+3}]"


vLane, vN, vG, vKo, vVo = 1, 2, 3, 4, 5
vTr64 = 6
vTr128 = 7
vTr256 = 8
vXA = 9
vL4 = 10
vStamp = 11
VK = 32
VS0, VS1, VTA = 96, 128, 160
VQB = 192
VSC = 208
VO = 192
VP = 224
VLA = 232
VONE = 236
VWQ = 240
VCS = 248
vB1, vB2, vXres, vXT = 252, 253, 254, 255
VWA, VWB = 128, 144

DPPX = "row_mask:0xf bank_mask:0xf"


def vr(b, n):
    return f"v[{b}:{b+n-1}]" if n > 1 else f"v{b}"


def gen(stamps=False, dbg=None, opt=None):
    opt = opt or {}
    a = Asm()
    a.raw(HEADER.rstrip("\n"))
    a.raw(f"; @launch grid=(256,1,1) block=(512,1,1) lds={LDS_BYTES}")
    a.raw('.amdgcn_target "amdgcn-amd-amdhsa--gfx950"')
    a.raw(".text")
    a.raw(f".globl {NAME}_kernel")
    a.raw(".p2align 8")
    a.raw(f".type {NAME}_kernel,@function")
    a.raw(f"{NAME}_kernel:")

    def stamp(k, layered=False):
        if not stamps:
            return
        a(f"s_memrealtime s[{sStampT}:{sStampT+1}]")
        a("s_waitcnt lgkmcnt(0)")
        if layered:
            a(f"s_lshl_b32 s{sStampT+1}, s{sLayer}, 4")
            a(f"s_add_u32 s{sStampT+1}, s{sStampT+1}, {k}")
            a(f"s_mov_b32 m0, s{sStampT+1}")
            a(f"v_writelane_b32 v{vStamp}, s{sStampT}, m0")
        else:
            a(f"v_writelane_b32 v{vStamp}, s{sStampT}, {k}")

    def ortree(rs, tmp):
        if len(rs) == 1:
            return rs[0]
        if len(rs) >= 3:
            a(f"v_or3_b32 v{tmp}, v{rs[0]}, v{rs[1]}, v{rs[2]}")
            i = 3
        else:
            a(f"v_or_b32 v{tmp}, v{rs[0]}, v{rs[1]}")
            i = 2
        while i < len(rs):
            if i + 1 < len(rs):
                a(f"v_or3_b32 v{tmp}, v{tmp}, v{rs[i]}, v{rs[i+1]}")
                i += 2
            else:
                a(f"v_or_b32 v{tmp}, v{tmp}, v{rs[i]}")
                i += 1
        return tmp

    def setbits(v):
        a(f"v_and_or_b32 v{v}, v{v}, -4, s{sBits}")

    def poll(loads, regs, tmp, sleep=0):
        L = a.newlabel("POLL")
        D = a.newlabel("PDONE")
        a.label(L)
        for ld in loads:
            a(ld)
        a("s_waitcnt vmcnt(0)")
        cur = ortree(list(regs), tmp)
        a(f"v_and_b32 v{tmp}, s{sMask}, v{cur}")
        a(f"v_cmp_ne_u32 vcc, 0, v{tmp}")
        a(f"s_cbranch_vccz {D}")
        if sleep:
            a(f"s_sleep {sleep}")
        a(f"s_add_u32 s{sTO}, s{sTO}, 1")
        a(f"s_cmp_lt_u32 s{sTO}, 40000")
        a(f"s_cbranch_scc1 {L}")
        a.label(D)

    def fast_store(instr):
        Ls = a.newlabel("SLOW")
        Le = a.newlabel("SEND")
        a(f"s_cmp_eq_u32 s{sFast}, 0")
        a(f"s_cbranch_scc1 {Ls}")
        for i in instr:
            a(i)
        a(f"s_branch {Le}")
        a.label(Ls)
        for i in instr:
            a(i + (" sc1" if i.startswith("buffer") else ""))
        a.label(Le)

    def bf16round(v):
        a(f"v_cvt_pk_bf16_f32 v{v}, v{v}, v{v}")
        a(f"v_lshlrev_b32 v{v}, 16, v{v}")

    def ln_stats(vss, vs):
        a(f"v_mul_f32 v{vs}, {f32(1/512)}, v{vs}")
        a(f"v_mul_f32 v{vss}, {f32(1/512)}, v{vss}")
        a(f"v_fma_f32 v{vss}, -v{vs}, v{vs}, v{vss}")
        a(f"v_max_f32 v{vss}, 0, v{vss}")
        a(f"v_add_f32 v{vss}, {f32(1e-5)}, v{vss}")
        a(f"v_rsq_f32 v{vss}, v{vss}")

    def swap_red(op, regs, tmps, which):
        for r, t in zip(regs, tmps):
            a(f"v_mov_b32 v{t}, v{r}")
        for r, t in zip(regs, tmps):
            a(f"v_permlane{which}_swap_b32 v{r}, v{t}")
        for r, t in zip(regs, tmps):
            a(f"{op} v{r}, v{r}, v{t}")

    a("s_cmp_ge_u32 s2, 256")
    a("s_cbranch_scc1 L_END")
    if stamps:
        a(f"s_memrealtime s[{sFirst}:{sFirst+1}]")
    for n, off in ((SRD_WQ, 24), (SRD_X, 0), (SRD_K, 8), (SRD_WS, 96), (SRD_V, 16)):
        a(f"s_load_dwordx2 s[{n}:{n+1}], s[0:1], {off}")
    a(f"v_lshrrev_b32 v{vLane}, 6, v0")
    a(f"s_and_b32 s{sC}, s2, 7")
    a(f"v_readfirstlane_b32 s{sW}, v{vLane}")
    a(f"s_lshr_b32 s{sJ}, s2, 3")
    a(f"s_lshl_b32 s{sU}, s{sC}, 5")
    a(f"s_add_u32 s{sU}, s{sU}, s{sJ}")
    a(f"s_lshr_b32 s{sH}, s{sU}, 3")
    a(f"s_and_b32 s{sS}, s{sU}, 7")
    a(f"v_and_b32 v{vLane}, 63, v0")
    a(f"v_and_b32 v{vN}, 15, v0")
    a(f"v_bfe_u32 v{vG}, v0, 4, 2")
    a(f"v_and_b32 v12, 3, v{vN}")
    a(f"v_lshlrev_b32 v12, 10, v12")
    a(f"v_lshrrev_b32 v13, 2, v{vN}")
    a(f"v_lshl_add_u32 v12, v13, 8, v12")
    a(f"v_lshl_add_u32 v{vKo}, v{vG}, 4, v12")
    a(f"v_lshlrev_b32 v{vVo}, 4, v{vLane}")
    a(f"v_lshlrev_b32 v{vL4}, 2, v{vLane}")
    a(f"s_lshl_b32 s{sKV}, s{sU}, 17")
    a(f"s_lshl_b32 s{sT0}, s{sW}, 14")
    a(f"s_add_u32 s{sKV}, s{sKV}, s{sT0}")
    a(f"s_cmp_lt_u32 s{sJ}, 16")
    a(f"s_cselect_b32 s{sIsS3}, 1, 0")
    a(f"s_cselect_b32 s{SRD_WO+2}, 0x400000, 0")
    a(f"s_min_u32 s{sF}, s{sC}, 3")
    a(f"s_mul_i32 s{sT0}, s{sC}, 5")
    a(f"s_add_u32 s{sF}, s{sF}, s{sT0}")
    a(f"s_add_u32 s{sF}, s{sF}, s{sJ}")
    a(f"s_sub_u32 s{sF}, s{sF}, 16")
    a(f"s_cmp_lt_u32 s{sC}, 3")
    a(f"s_cselect_b32 s{sT0}, 6, 5")
    a(f"s_sub_u32 s{sT1}, s{sJ}, 16")
    a(f"s_cmp_lt_u32 s{sT1}, s{sT0}")
    a(f"s_cselect_b32 s{sIsFFN}, 1, 0")
    a(f"s_cselect_b32 s{sF}, s{sF}, 0")
    a(f"s_cselect_b32 s{SRD_W1+2}, {512*2752}, 0")
    a(f"s_cselect_b32 s{SRD_W2+2}, {1376*1024}, 0")
    for n, size in ((SRD_K, 0x2000000), (SRD_V, 0x2000000), (SRD_WQ, 0x400000), (SRD_WS, 0x10000000), (SRD_X, 1024),
                    (SRD_B1, 2752), (SRD_B2, 1024), (SRD_OUT, 1024)):
        a(f"s_mov_b32 s{n+2}, {size}")
    for i in range(11):
        a(f"s_mov_b32 s{32+4*i+3}, 0x20000")
    a(f"s_mov_b32 s{sTO}, 0")
    a(f"s_mov_b32 s{sLayer}, 0")
    a(f"s_mov_b32 s{sFast}, 0")
    a(f"v_mov_b32 v{vStamp}, 0")
    a(f"v_lshlrev_b32 v16, 13, v{vG}")
    a(f"v_lshl_add_u32 v16, v{vN}, 4, v16")
    a(f"s_lshl_b32 s{sT0}, s{sS}, 19")
    a(f"s_lshl_b32 s{sT1}, s{sH}, 8")
    a(f"s_add_u32 s{sT0}, s{sT0}, s{sT1}")
    a(f"v_lshlrev_b32 v17, 4, v{vG}")
    a(f"s_lshl_b32 s{sT1}, s{sS}, 7")
    a("s_waitcnt lgkmcnt(0)")
    for n, off in ((SRD_WO, 32), (SRD_W1, 48), (SRD_W2, 64), (SRD_B1, 56), (SRD_B2, 72), (SRD_OUT, 80)):
        a(f"s_load_dwordx2 s[{n}:{n+1}], s[0:1], {off}")
    a(f"s_cmp_lg_u32 s{sW}, 0")
    a("s_cbranch_scc1 L_NOTW0")
    a(f"v_mov_b32 v18, {EPB}")
    a(f"buffer_load_dwordx2 {vr(VCS,2)}, v18, {srd(SRD_WS)}, 0 offen sc1")
    for i in range(16):
        a(f"s_mov_b32 m0, {L_WQ + i*1024}")
        a(f"buffer_load_dwordx4 v16, {srd(SRD_WQ)}, s{sT0} offen nt lds")
        a(f"s_add_u32 s{sT0}, s{sT0}, {4*8192}")
    a(f"buffer_load_dwordx4 v[20:23], v17, {srd(SRD_X)}, s{sT1} offen")
    a(f"buffer_load_dwordx4 v[24:27], v17, {srd(SRD_X)}, s{sT1} offen offset:64")
    a(f"buffer_load_dwordx4 v[28:31], v{vVo}, {srd(SRD_X)}, 0 offen")
    a("s_branch L_COMMON")
    a.label("L_NOTW0")
    a(f"s_cmp_lg_u32 s{sW}, 1")
    a("s_cbranch_scc1 L_NOTW1")
    a(f"v_mov_b32 v18, {EPB}")
    a(f"buffer_load_dwordx2 {vr(VCS,2)}, v18, {srd(SRD_WS)}, 0 offen sc1")
    a(f"v_mov_b32 v17, 0")
    a(f"ds_write_b32 v17, v17 offset:{L_ACK}")
    a("s_waitcnt lgkmcnt(0)")
    a(f"s_cmp_lt_u32 s{sJ}, 28")
    a("s_cbranch_scc1 L_COMMON")
    for i in range(4):
        a(f"v_mov_b32 v{12+i}, -1")
    a(f"s_lshl_b32 s{sT0}, s{sC}, 2")
    a(f"s_add_u32 s{sT0}, s{sT0}, s{sJ}")
    a(f"s_lshl_b32 s{sT0}, s{sT0}, 13")
    a(f"s_add_u32 s{sT0}, s{sT0}, {G - 28*8192}")
    a(f"s_add_u32 s{sT1}, s{sT0}, 4096")
    for i in range(0 if opt.get("noclr") else 8):
        a(f"buffer_store_dwordx4 v[12:15], v{vVo}, {srd(SRD_WS)}, s{sT0 if i < 4 else sT1} offen offset:{(i%4)*1024} sc1")
    a("s_branch L_COMMON")
    a.label("L_NOTW1")
    if opt.get("codepf", True):
        a(f"s_cmp_lg_u32 s{sW}, 2")
        a("s_cbranch_scc1 L_COMMON")
        a(f"s_cmp_ge_u32 s{sJ}, 2")
        a("s_cbranch_scc1 L_COMMON")
        a(f"s_getpc_b64 s[{sPC}:{sPC+1}]")
        a.label("L_PC")
        a(f"v_mov_b32 v16, v{vVo}")
        for i in range(opt.get("codekb", 10)):
            a(f"v_min_u32 v17, L_END-L_PC-12, v16")
            a(f"global_load_dwordx4 {vr(VP,4)}, v17, s[{sPC}:{sPC+1}]")
            a(f"v_add_u32 v16, 1024, v16")
    a.label("L_COMMON")
    if stamps:
        a(f"v_writelane_b32 v{vStamp}, s{sFirst}, 15")
    a(f"s_mov_b32 s{sPermLo}, 0x05040100")
    a(f"s_mov_b32 s{sPermHi}, 0x07060302")
    a(f"s_mov_b32 s{sScale}, {f32(1.4426950408889634 / 128 ** 0.5)}")
    a(f"s_mov_b64 s[{sM16}:{sM16+1}], 0xffff")
    a(f"s_mov_b32 s{sMg1}, 0xffff0000")
    a(f"s_mov_b32 s{sMg1+1}, 0")
    a(f"s_mov_b32 s{sMg2}, 0")
    a(f"s_mov_b32 s{sMg2+1}, 0xffff")
    a(f"s_mov_b32 s{sMg3}, 0")
    a(f"s_mov_b32 s{sMg3+1}, 0xffff0000")
    a(f"s_mov_b32 s{sMn0}, 0x00030003")
    a(f"s_mov_b32 s{sMn0+1}, 0x00030003")
    a(f"s_mov_b32 s{sMask}, 1")
    a(f"s_mov_b32 s{sBits}, 2")
    a(f"s_cmp_eq_u32 s{sW}, 0")
    a("s_cbranch_scc1 L_BULK")
    a("s_barrier")

    def mktag():
        a(f"v_readfirstlane_b32 s{sEp}, v{VCS}")
        a(f"v_readfirstlane_b32 s{sEp+1}, v{VCS+1}")
        a(f"s_getreg_b32 s{sT2}, hwreg(HW_REG_XCC_ID, 0, 4)")
        a(f"s_add_u32 s{sEp}, s{sEp}, 1")
        a(f"s_and_b32 s{sT3}, s{sEp+1}, 0xffffff00")
        a(f"s_or_b32 s{sT2}, s{sT2}, s{sT3}")
        a(f"s_mov_b32 s{sEp+1}, s{sEp}")
    Lb1 = a.newlabel("B1")
    a(f"s_cmp_lg_u32 s{sW}, 1")
    a(f"s_cbranch_scc1 {Lb1}")
    a("s_waitcnt vmcnt(0)")
    mktag()
    a(f"v_mov_b32 v18, s{sEp}")
    a(f"v_mov_b32 v19, s{sT2}")
    a(f"s_lshl_b32 s{sT0}, s{sU}, 7")
    a(f"s_add_u32 s{sT0}, s{sT0}, {FLB}")
    a(f"s_mov_b64 exec, 1")
    if not opt.get("nofl"): a(f"buffer_store_dwordx2 v[18:19], v{vL4}, {srd(SRD_WS)}, s{sT0} offen sc1")
    a(f"s_mov_b64 exec, -1")
    stamp(20)
    a.label(Lb1)

    def bulk(cap, trig=False):
        n = 0
        if trig and not cap: a("s_setprio 2")
        for T in range(4):
            a(f"s_add_u32 s{sT0}, s{sKV}, {T*4096}")
            for j in range(4):
                if cap and n >= cap:
                    a(f"s_waitcnt vmcnt({cap-1})")
                n += 1
                if opt.get("kcontig"):
                    a(f"buffer_load_dwordx4 {vr(VK+16*T+4*j,4)}, v{vVo}, {srd(SRD_K)}, s{sT0} offen offset:{1024*j} nt")
                else:
                    a(f"buffer_load_dwordx4 {vr(VK+16*T+4*j,4)}, v{vKo}, {srd(SRD_K)}, s{sT0} offen offset:{64*j} nt")
        for b in range(2):
            for i in range(8):
                if trig and not cap and i == 0: a(f"s_setprio {1-b}")
                if trig and n == opt.get("trig", 16):
                    Lt = a.newlabel("NT")
                    a(f"s_cmp_lg_u32 s{sW}, {opt.get('trigw', 7)}")
                    a(f"s_cbranch_scc1 {Lt}")
                    a(f"v_mov_b32 v17, 0")
                    a(f"v_mov_b32 v18, 1")
                    a(f"ds_write_b32 v17, v18 offset:{L_ACK}")
                    a.label(Lt)
                if i % 4 == 0:
                    a(f"s_add_u32 s{sT0}, s{sKV}, {b*8192 + (i//4)*4096}")
                base = (VS0 if b == 0 else VS1) + 4 * i
                if cap and n < opt.get("capn", 24):
                    a(f"s_waitcnt vmcnt({cap-1})")
                n += 1
                a(f"buffer_load_dwordx4 {vr(base,4)}, v{vVo}, {srd(SRD_V)}, s{sT0} offen offset:{(i%4)*1024} nt")
    bulk(opt.get("cap", 4), True)
    a("s_branch L_BULKD")
    a.label("L_BULK")
    bulk(0)
    a.label("L_BULKD")
    NAFTER = 0
    a(f"s_lshl_b32 s{sT2}, s{sW}, 12")
    a(f"v_lshrrev_b32 v12, 2, v{vN}")
    a(f"v_lshl_add_u32 v12, v{vG}, 3, v12")
    a(f"v_and_b32 v13, 3, v{vN}")
    a(f"v_lshlrev_b32 v13, 3, v13")
    a(f"v_lshl_add_u32 v{vTr64}, v12, 6, v13")
    a(f"v_lshl_add_u32 v{vTr128}, v12, 7, v13")
    a(f"v_lshl_add_u32 v{vTr256}, v12, 8, v13")
    a(f"v_add_u32 v{vTr64}, s{sT2}, v{vTr64}")
    a(f"v_add_u32 v{vTr128}, s{sT2}, v{vTr128}")
    for i in range(4):
        a(f"v_mov_b32 v{VONE+i}, 0x3f803f80")
    a(f"s_lshl_b32 s{sT0}, s{sW}, 7")
    a(f"s_add_u32 s{sT0}, s{sT0}, {L_XT}")
    a(f"v_lshl_add_u32 v12, v{vG}, 4, s{sT0}")
    a(f"v_lshl_add_u32 v{vXT}, v{vLane}, 1, s{sT0}")
    a(f"v_mov_b32 v13, {L_ONES}")
    a(f"v_cmp_eq_u32 vcc, 1, v{vN}")
    a(f"v_cndmask_b32 v{vXA}, v12, v13, vcc")
    stamp(3)
    if opt.get("loadonly"):
        Lx_ = a.newlabel("LO")
        a(f"s_cmp_lg_u32 s{sW}, 0")
        a(f"s_cbranch_scc1 {Lx_}")
        a("s_barrier")
        if opt["loadonly"] == 2:
            a("s_branch L_SVC")
        a.label(Lx_)
        a("s_waitcnt vmcnt(0)")
        stamp(14)
        a("s_branch L_FIN")
    a(f"s_cmp_lg_u32 s{sW}, 0")
    a("s_cbranch_scc1 L_QBAR")
    a("s_barrier")
    a.label("L_SVC")
    a("s_setprio 3")
    a(f"s_mov_b64 exec, 0xff")
    a(f"ds_write_b128 v{vVo}, {vr(VONE,4)} offset:{L_ONES}")
    a(f"s_mov_b64 exec, -1")
    a(f"s_waitcnt vmcnt(32)")
    stamp(16)
    a(f"v_cmp_eq_u32 vcc, 1, v{vN}")
    for i in range(8):
        a(f"v_cndmask_b32 v{20+i}, v{20+i}, v{VONE}, vcc")
    a(f"v_mov_b32 v16, 0")
    a(f"v_mov_b32 v17, 0")
    for i in range(4):
        a(f"v_dot2_f32_bf16 v16, v{28+i}, v{28+i}, v16")
        a(f"v_dot2_f32_bf16 v17, v{28+i}, v{VONE}, v17")
    a("s_nop 3")
    for dpp in ("quad_perm:[1,0,3,2]", "quad_perm:[2,3,0,1]", "row_half_mirror", "row_mirror"):
        a(f"v_add_f32_dpp v16, v16, v16 {dpp} {DPPX}")
        a(f"v_add_f32_dpp v17, v17, v17 {dpp} {DPPX}")
    swap_red("v_add_f32", [16, 17], [18, 19], 16)
    swap_red("v_add_f32", [16, 17], [18, 19], 32)
    ln_stats(16, 17)
    for half in range(2):
        for c4 in range(4):
            cg = half * 4 + c4
            for kc in range(2):
                b = VTA + 8 * c4 + 4 * kc
                off = L_WQ + kc * 32 * 256 + cg * 32
                a(f"ds_read_b64_tr_b16 {vr(b,2)}, v{vTr256} offset:{off}")
                a(f"ds_read_b64_tr_b16 {vr(b+2,2)}, v{vTr256} offset:{off+1024}")
            if c4 % 2 == 1:
                a("s_waitcnt lgkmcnt(0)")
        for c4 in range(4):
            cg = half * 4 + c4
            a(f"v_mfma_f32_16x16x32_bf16 {vr(VO+4*cg,4)}, v[20:23], {vr(VTA+8*c4,4)}, 0")
            a(f"v_mfma_f32_16x16x32_bf16 {vr(VO+4*cg,4)}, v[24:27], {vr(VTA+8*c4+4,4)}, {vr(VO+4*cg,4)}")
        a("s_nop 7")
    for cg in range(8):
        a(f"v_fma_f32 v{VO+4*cg}, -v17, v{VO+4*cg+1}, v{VO+4*cg}")
        a(f"v_mul_f32 v{VO+4*cg}, v16, v{VO+4*cg}")
    a(f"s_mov_b64 exec, s[{sM16}:{sM16+1}]")
    for cg in range(8):
        a(f"ds_write_b32 v{vL4}, v{VO+4*cg} offset:{L_O+cg*64}")
        a(f"ds_write_b32 v{vL4}, v{VO+4*cg+1} offset:{L_O+512+cg*64}")
    a(f"s_mov_b64 exec, -1")
    a(f"v_lshrrev_b32 v16, 5, v{vLane}")
    a(f"v_lshlrev_b32 v16, 17, v16")
    a(f"v_and_b32 v17, 31, v{vLane}")
    a(f"v_lshl_add_u32 v16, v17, 4, v16")
    a(f"s_lshl_b32 s{sT0}, s{sU}, 9")
    a("s_waitcnt lgkmcnt(0)")
    a(f"v_lshlrev_b32 v17, 3, v{vLane}")
    a(f"ds_read_b128 v[12:15], v{vVo} offset:{L_O}")
    a(f"ds_read_b64 v[24:25], v17 offset:{L_O}")
    mktag()
    a(f"v_mov_b32 v29, s{sEp}")
    a(f"v_mov_b32 v31, s{sEp+1}")
    a(f"s_lshl_b32 s{sT5}, s{sU}, 10")
    a(f"s_add_u32 s{sT5}, s{sT5}, {QGB}")
    a(f"s_mov_b32 s{sT6}, s{sT0}")
    a(f"v_mov_b32 v27, v16")
    a("s_waitcnt lgkmcnt(0)")
    a(f"v_mov_b32 v28, v24")
    a(f"v_mov_b32 v30, v25")
    a(f"buffer_store_dwordx4 v[28:31], v{vVo}, {srd(SRD_WS)}, s{sT5} offen")
    for i in range(4):
        setbits(12 + i)
    stamp(19)
    if opt.get("noread"): a("s_branch L_FIN")
    a(f"v_bfe_u32 v16, v{vLane}, 2, 3")
    a(f"v_lshlrev_b32 v16, 5, v16")
    a(f"v_and_or_b32 v16, v{vLane}, 3, v16")
    a(f"v_add_u32 v16, 28, v16")
    a(f"s_lshl_b32 s{sT0}, s{sC}, 5")
    a(f"v_add_u32 v17, s{sT0}, v{vLane}")
    a(f"v_cmp_gt_u32 vcc, 32, v{vLane}")
    a(f"v_cndmask_b32 v26, v16, v17, vcc")
    a(f"v_lshlrev_b32 v26, 7, v26")
    a(f"s_mov_b32 s{sT1}, {FLB}")
    a(f"s_lshl_b32 s{sT0}, s{sH}, 13")
    a(f"s_add_u32 s{sT0}, s{sT0}, {QGB}")
    a(f"s_add_u32 s{sT3}, s{sT0}, 4096")
    a(f"v_mov_b32 v17, 0")
    La = a.newlabel("TRIG")
    a.label(La)
    a("s_sleep 2")
    a(f"ds_read_b32 v18, v17 offset:{L_ACK}")
    a("s_waitcnt lgkmcnt(0)")
    a(f"v_cmp_eq_u32 vcc, 0, v18")
    a(f"s_cbranch_vccnz {La}")
    stamp(4)

    def qg_loads():
        for k in range(8):
            a(f"buffer_load_dwordx4 {vr(VO+4*k,4)}, v{vVo}, {srd(SRD_WS)}, s{sT0 if k < 4 else sT3} offen offset:{1024*(k%4)} sc1")
    qg_loads()
    Lf = a.newlabel("FLAG")
    Lfd = a.newlabel("FLAGD")
    a.label(Lf)
    a(f"buffer_load_dwordx2 v[20:21], v26, {srd(SRD_WS)}, s{sT1} offen sc1")
    a("s_waitcnt vmcnt(0)")
    a(f"v_xor_b32 v20, s{sEp}, v20")
    a(f"v_xor_b32 v21, s{sT2}, v21")
    a(f"v_lshrrev_b32 v17, 8, v21")
    a(f"v_or_b32 v16, v20, v17")
    a(f"v_cmp_ne_u32 vcc, 0, v16")
    a(f"s_cbranch_vccz {Lfd}")
    a(f"s_sleep {opt.get('sleep_f', 8)}")
    a(f"s_add_u32 s{sTO}, s{sTO}, 8")
    a(f"s_cmp_lt_u32 s{sTO}, 40000")
    a(f"s_cbranch_scc1 {Lf}")
    a.label(Lfd)
    a(f"v_cmp_ne_u32 vcc, 0, v21")
    a(f"s_cmp_eq_u32 vcc_lo, 0")
    a(f"s_cselect_b32 s{sFast}, {0 if opt.get('nofast') else 1}, 0")
    a(f"v_mov_b32 v16, s{sFast}")
    a(f"v_mov_b32 v17, {L_FLAG}")
    a(f"ds_write_b32 v17, v16")
    fast_store([f"buffer_store_dwordx4 v[12:15], v27, {srd(SRD_WS)}, s{sT6} offen"])
    Lq = a.newlabel("QG")
    Lq0 = a.newlabel("QG0")
    Lqd = a.newlabel("QGD")
    a(f"s_cmp_lg_u32 s{sFast}, 0")
    a(f"s_cbranch_scc1 {Lq0}")
    a(f"buffer_store_dwordx4 v[28:31], v{vVo}, {srd(SRD_WS)}, s{sT5} offen sc1")
    a(f"s_branch {Lq0}")
    a.label(Lq)
    qg_loads()
    a("s_waitcnt vmcnt(0)")
    a.label(Lq0)
    a(f"v_mov_b32 v16, 0")
    for k in range(8):
        a(f"v_xor_b32 v{VO+4*k+1}, s{sEp}, v{VO+4*k+1}")
        a(f"v_xor_b32 v{VO+4*k+3}, s{sEp+1}, v{VO+4*k+3}")
        a(f"v_or3_b32 v16, v16, v{VO+4*k+1}, v{VO+4*k+3}")
    a(f"v_cmp_ne_u32 vcc, 0, v16")
    a(f"s_cbranch_vccz {Lqd}")
    a(f"s_sleep {opt.get('sleep_f', 8)}")
    a(f"s_add_u32 s{sTO}, s{sTO}, 8")
    a(f"s_cmp_lt_u32 s{sTO}, 40000")
    a(f"s_cbranch_scc1 {Lq}")
    a.label(Lqd)
    stamp(5)
    a(f"v_add_f32 v20, v{VO}, v{VO+4}")
    a(f"v_add_f32 v21, v{VO+2}, v{VO+6}")
    for k in range(2, 8):
        a(f"v_add_f32 v20, v20, v{VO+4*k}")
        a(f"v_add_f32 v21, v21, v{VO+4*k+2}")
    a(f"v_cvt_pk_bf16_f32 v20, v20, v21")
    a(f"ds_write_b32 v{vL4}, v20 offset:{L_Q}")
    a("s_waitcnt lgkmcnt(0)")

    def sum4x4(dst, VO=VO):
        for r in range(4):
            a(f"v_add_f32 v{VO+r}, v{VO+r}, v{VO+4+r}")
            a(f"v_add_f32 v{VO+8+r}, v{VO+8+r}, v{VO+12+r}")
        for r in range(4):
            a(f"v_add_f32 v{dst+r}, v{VO+r}, v{VO+8+r}")
        swap_red("v_add_f32", [dst + r for r in range(4)], [VO + r for r in range(4)], 32)

    a("s_branch L_FIN" if opt.get("loadonly") else "s_branch L_S2")
    a.label("L_QBAR")
    a("s_barrier")
    a.label("L_S2")
    stamp(6, True)
    a(f"v_lshlrev_b32 v12, 4, v{vG}")
    a(f"v_mov_b32 v13, {L_FLAG}")
    for j in range(4):
        a(f"ds_read_b128 {vr(VQB+4*j,4)}, v12 offset:{L_Q+64*j}")
    a(f"ds_read_b32 v13, v13")
    a(f"s_waitcnt vmcnt({16+NAFTER}) lgkmcnt(0)")
    a(f"v_readfirstlane_b32 s{sFast}, v13")
    for T in range(4):
        for j in range(4):
            c = "0" if j == 0 else vr(VSC + 4 * T, 4)
            a(f"v_mfma_f32_16x16x32_bf16 {vr(VSC+4*T,4)}, {vr(VK+16*T+4*j,4)}, {vr(VQB+4*j,4)}, {c}")
    a(f"v_max3_f32 v12, v{VSC}, v{VSC+1}, v{VSC+2}")
    for i in range(3, 15, 2):
        a(f"v_max3_f32 v12, v12, v{VSC+i}, v{VSC+i+1}")
    a(f"v_max_f32 v12, v12, v{VSC+15}")
    swap_red("v_max_f32", [12], [13], 32)
    swap_red("v_max_f32", [12], [13], 16)
    a(f"v_mul_f32 v12, s{sScale}, v12")
    for i in range(16):
        a(f"v_fma_f32 v{VSC+i}, v{VSC+i}, s{sScale}, -v12")
    for i in range(16):
        a(f"v_exp_f32 v{VSC+i}, v{VSC+i}")
    for i in range(8):
        a(f"v_cvt_pk_bf16_f32 v{VP+i}, v{VSC+2*i}, v{VSC+2*i+1}")
    stamp(7, True)
    VT = [VTA, VS0]
    VSRC = [VS0, VS1]
    for b in range(2):
        Ls = a.newlabel("NOTR")
        a(f"s_cmp_lg_u32 s{sLayer}, 0")
        a(f"s_cbranch_scc1 {Ls}")
        for e2 in range(4):
            a(f"s_waitcnt vmcnt({NAFTER + (8 if b == 0 else 0) + 6 - 2*e2})")
            for d in range(4):
                r0 = VSRC[b] + 4 * (2 * e2) + d
                r1 = VSRC[b] + 4 * (2 * e2 + 1) + d
                a(f"v_perm_b32 v{VT[b] + 4*(2*d) + e2}, v{r1}, v{r0}, s{sPermLo}")
                a(f"v_perm_b32 v{VT[b] + 4*(2*d+1) + e2}, v{r1}, v{r0}, s{sPermHi}")
        a.label(Ls)
        for jj in range(8):
            c = "0" if b == 0 else vr(VO + 4 * jj, 4)
            a(f"v_mfma_f32_16x16x32_bf16 {vr(VO+4*jj,4)}, {vr(VP+4*b,4)}, {vr(VT[b]+4*jj,4)}, {c}")
        c = "0" if b == 0 else vr(VLA, 4)
        a(f"v_mfma_f32_16x16x32_bf16 {vr(VLA,4)}, {vr(VP+4*b,4)}, {vr(VONE,4)}, {c}")
    a(f"s_lshl_b32 s{sT0}, s{sW}, 9")
    a(f"s_add_u32 s{sT0}, s{sT0}, {L_O}")
    a(f"v_lshl_add_u32 v13, v{vN}, 5, s{sT0}")
    a(f"s_lshl_b32 s{sT0}, s{sW}, 2")
    a(f"s_add_u32 s{sT0}, s{sT0}, {L_M}")
    a(f"v_mov_b32 v14, s{sT0}")
    a(f"s_mov_b64 exec, s[{sM16}:{sM16+1}]")
    for k in range(4):
        a(f"ds_write2_b32 v13, v{VO+8*k}, v{VO+8*k+4} offset0:{2*k} offset1:{2*k+1}")
    a(f"ds_write2_b32 v14, v12, v{VLA} offset0:0 offset1:{(L_L-L_M)//4}")
    a(f"s_mov_b64 exec, -1")
    Lnw = a.newlabel("NOWL")
    a(f"s_or_b32 s{sT0}, s{sLayer}, s{sW}")
    a(f"s_cmp_lg_u32 s{sT0}, 0")
    a(f"s_cbranch_scc1 {Lnw}")
    a("s_barrier")
    a(f"s_or_b32 s{sT0}, s{sIsS3}, s{sIsFFN}")
    a(f"s_cmp_eq_u32 s{sT0}, 0")
    a(f"s_cbranch_scc1 {Lnw}")
    a(f"s_cmp_eq_u32 s{sIsS3}, 1")
    a(f"s_cselect_b32 s{SRD_W1}, s{SRD_WO}, s{SRD_W1}")
    a(f"s_cselect_b32 s{SRD_W1+1}, s{SRD_WO+1}, s{SRD_W1+1}")
    a(f"s_cselect_b32 s{SRD_W1+2}, s{SRD_WO+2}, s{SRD_W1+2}")
    a(f"s_movk_i32 s{sT4}, 2752")
    a(f"s_cselect_b32 s{sT4}, 1024, s{sT4}")
    a(f"s_cselect_b32 s{sT1}, s{sJ}, s{sF}")
    a(f"s_cselect_b32 s{sT5}, s{sC}, 0")
    a(f"v_lshrrev_b32 v12, 2, v{vLane}")
    a(f"v_and_b32 v13, 3, v{vLane}")
    a(f"v_lshlrev_b32 v13, 4, v13")
    a(f"v_mad_u32_u24 v15, v12, s{sT4}, v13")
    a(f"s_lshl_b32 s{sT5}, s{sT5}, 19")
    a(f"s_lshl_b32 s{sT1}, s{sT1}, 6")
    a(f"s_add_u32 s{sT0}, s{sT1}, s{sT5}")
    a(f"s_lshl_b32 s{sT4}, s{sT4}, 4")
    a(f"s_mov_b32 m0, {L_WA}")
    Lwl = a.newlabel("WL")
    a.label(Lwl)
    a(f"buffer_load_dwordx4 v15, {srd(SRD_W1)}, s{sT0} offen nt lds")
    a(f"s_add_u32 s{sT0}, s{sT0}, s{sT4}")
    a(f"s_add_u32 m0, m0, 1024")
    a(f"s_cmp_lt_u32 m0, {L_WA + 32768}")
    a(f"s_cbranch_scc1 {Lwl}")
    stamp(0)
    a.label(Lnw)
    a(f"v_mov_b32 v12, 0")
    a(f"v_lshlrev_b32 v13, 3, v{vLane}")
    a(f"v_lshrrev_b32 v{VP+6}, 2, v{vLane}")
    a(f"v_lshlrev_b32 v{VP+6}, 8, v{VP+6}")
    a(f"v_and_b32 v{VP+7}, 3, v{vLane}")
    a(f"v_lshl_add_u32 v{VP+6}, v{VP+7}, 2, v{VP+6}")
    a(f"s_lshl_b32 s{sT0}, s{sH}, 12")
    a(f"s_lshl_b32 s{sT1}, s{sS}, 4")
    a(f"s_add_u32 s{sT0}, s{sT0}, s{sT1}")
    a(f"s_add_u32 s{sT0}, s{sT0}, {OPB}")
    a(f"s_lshl_b32 s{sT1}, s{sH}, 6")
    a(f"s_and_b32 s{sT2}, s{sS}, 3")
    a(f"s_lshl_b32 s{sT2}, s{sT2}, 4")
    a(f"s_add_u32 s{sT1}, s{sT1}, s{sT2}")
    a(f"s_lshr_b32 s{sT2}, s{sS}, 2")
    a(f"s_lshl_b32 s{sT2}, s{sT2}, 3")
    a(f"s_add_u32 s{sT1}, s{sT1}, s{sT2}")
    a(f"s_add_u32 s{sT1}, s{sT1}, {MLB}")
    a("s_waitcnt lgkmcnt(0)")
    stamp(14, True)
    a("s_barrier")
    stamp(8, True)
    Lw0 = a.newlabel("W0")
    a(f"s_cmp_eq_u32 s{sW}, 0")
    a(f"s_cbranch_scc1 {Lw0}")
    a(f"s_cmp_lg_u32 s{sW}, 1")
    a("s_cbranch_scc1 L_S2DONE")
    a(f"s_lshl_b32 s{sT0}, s{sU}, 2")
    a(f"s_add_u32 s{sT0}, s{sT0}, {CNB}")
    a(f"v_mov_b32 v13, s{sBits}")
    a(f"s_mov_b64 exec, 1")
    fast_store([f"buffer_store_dword v13, v12, {srd(SRD_WS)}, s{sT0} offen"])
    a(f"s_mov_b64 exec, -1")
    a("s_branch L_S2DONE")
    a.label(Lw0)
    a(f"ds_read_b128 v[16:19], v12 offset:{L_M}")
    a(f"ds_read_b128 v[20:23], v12 offset:{L_M+16}")
    a(f"ds_read_b128 v[24:27], v12 offset:{L_L}")
    a(f"ds_read_b128 v[28:31], v12 offset:{L_L+16}")
    for w in range(8):
        a(f"ds_read_b64 {vr(VO+2*w,2)}, v13 offset:{L_O+512*w}")
    a("s_waitcnt lgkmcnt(10)")
    a(f"v_max3_f32 v14, v16, v17, v18")
    a(f"v_max3_f32 v14, v14, v19, v20")
    a(f"v_max3_f32 v14, v14, v21, v22")
    a(f"v_max_f32 v14, v14, v23")
    for w in range(8):
        a(f"v_sub_f32 v{16+w}, v{16+w}, v14")
    for w in range(8):
        a(f"v_exp_f32 v{16+w}, v{16+w}")
    a("s_waitcnt lgkmcnt(0)")
    a(f"v_mul_f32 v{VP}, v16, v{VO}")
    a(f"v_mul_f32 v{VP+1}, v16, v{VO+1}")
    for w in range(1, 8):
        a(f"v_fmac_f32 v{VP}, v{16+w}, v{VO+2*w}")
        a(f"v_fmac_f32 v{VP+1}, v{16+w}, v{VO+2*w+1}")
    a(f"v_cvt_pk_bf16_f32 v{VP+2}, v{VP}, v{VP+1}")
    setbits(VP + 2)
    a(f"v_lshlrev_b32 v{VP+3}, 16, v{VP+2}")
    a(f"v_and_b32 v{VP+4}, 0xffff0000, v{VP+2}")
    a(f"v_sub_f32 v{VP}, v{VP}, v{VP+3}")
    a(f"v_sub_f32 v{VP+1}, v{VP+1}, v{VP+4}")
    a(f"v_cvt_pk_bf16_f32 v{VP+3}, v{VP}, v{VP+1}")
    setbits(VP + 3)
    a(f"v_mul_f32 v15, v16, v24")
    for w in range(1, 8):
        a(f"v_fmac_f32 v15, v{16+w}, v{24+w}")
    setbits(14)
    setbits(15)
    fast_store([
        f"buffer_store_dword v{VP+2}, v{VP+6}, {srd(SRD_WS)}, s{sT0} offen",
        f"buffer_store_dword v{VP+3}, v{VP+6}, {srd(SRD_WS)}, s{sT0} offen offset:128",
        f"s_mov_b64 exec, 1",
        f"buffer_store_dwordx2 v[14:15], v12, {srd(SRD_WS)}, s{sT1} offen",
        f"s_mov_b64 exec, -1",
    ])
    stamp(9, True)
    a.label("L_S2DONE")
    Lw = a.newlabel("NOW")
    a(f"s_cmp_lg_u32 s{sLayer}, 0")
    a(f"s_cbranch_scc1 {Lw}")
    a(f"s_lshl_b32 s{sT0}, s{sW}, 5")
    a(f"v_add_u32 v12, s{sT0}, v{vTr256}")
    for kc in range(2):
        off = L_WQ + kc * 32 * 256
        a(f"ds_read_b64_tr_b16 {vr(VWQ+4*kc,2)}, v12 offset:{off}")
        a(f"ds_read_b64_tr_b16 {vr(VWQ+4*kc+2,2)}, v12 offset:{off+1024}")
    a(f"s_or_b32 s{sT0}, s{sIsS3}, s{sIsFFN}")
    a(f"s_cmp_eq_u32 s{sT0}, 0")
    a(f"s_cbranch_scc1 L_HOPE")
    Lnf = a.newlabel("NOF")
    a(f"s_cmp_eq_u32 s{sIsFFN}, 0")
    a(f"s_cbranch_scc1 {Lnf}")
    a(f"v_lshrrev_b32 v12, 3, v{vLane}")
    a(f"v_and_b32 v13, 7, v{vLane}")
    a(f"v_lshlrev_b32 v13, 4, v13")
    a(f"v_lshl_add_u32 v16, v12, 10, v13")
    a(f"s_lshl_b32 s{sT0}, s{sF}, 15")
    a(f"s_lshl_b32 s{sT1}, s{sW}, 7")
    a(f"s_add_u32 s{sT0}, s{sT0}, s{sT1}")
    a(f"s_lshl_b32 s{sT2}, s{sW}, 12")
    a(f"s_add_u32 s{sT3}, s{sT2}, {L_W2}")
    for i in range(4):
        a(f"s_mov_b32 m0, s{sT3}")
        a(f"buffer_load_dwordx4 v16, {srd(SRD_W2)}, s{sT0} offen nt lds")
        a(f"s_add_u32 s{sT0}, s{sT0}, {8*1024}")
        a(f"s_add_u32 s{sT3}, s{sT3}, 1024")
    a.label(Lnf)
    a("s_waitcnt vmcnt(0)")
    a("s_barrier")
    stamp(1, True)
    for cg in range(2):
        for kc in range(2):
            off = L_WA + kc * 32 * 64 + cg * 32
            a(f"ds_read_b64_tr_b16 {vr(VWA+8*cg+4*kc,2)}, v{vTr64} offset:{off}")
            a(f"ds_read_b64_tr_b16 {vr(VWA+8*cg+4*kc+2,2)}, v{vTr64} offset:{off+256}")
    a.label(Lw)

    a(f"s_cmp_eq_u32 s{sIsS3}, 0")
    a("s_cbranch_scc1 L_S4")
    a(f"s_lshl_b32 s{sT1}, s{sC}, 14")
    a(f"s_lshl_b32 s{sT2}, s{sW}, 11")
    a(f"s_add_u32 s{sT1}, s{sT1}, s{sT2}")
    a(f"s_add_u32 s{sT1}, s{sT1}, {OPB}")
    a(f"s_lshr_b32 s{sT0}, s{sW}, 1")
    a(f"s_lshl_b32 s{sT2}, s{sC}, 2")
    a(f"s_add_u32 s{sT0}, s{sT0}, s{sT2}")
    a(f"s_lshl_b32 s{sT0}, s{sT0}, 6")
    a(f"s_add_u32 s{sT0}, s{sT0}, {MLB}")
    a(f"v_and_b32 v13, 3, v{vLane}")
    a(f"v_lshlrev_b32 v13, 4, v13")
    a(f"s_or_b64 s[{sPC}:{sPC+1}], s[{sMg1}:{sMg1+1}], s[{sMg3}:{sMg3+1}]")
    a(f"s_lshl_b32 s{sT2}, s{sW}, 4")
    a(f"v_lshl_add_u32 v{VP}, v{vN}, 7, s{sT2}")
    a(f"v_lshl_add_u32 v{VP}, v{vG}, 2, v{VP}")
    a(f"v_and_b32 v{VP+1}, 31, v{vLane}")
    a(f"v_lshrrev_b32 v{VP+2}, 5, v{vLane}")
    a(f"v_lshlrev_b32 v{VP+1}, 7, v{VP+1}")
    a(f"v_lshl_add_u32 v{VP+1}, v{VP+2}, 6, v{VP+1}")
    a(f"s_lshl_b32 s{sT2}, s{sC}, 11")
    a(f"s_lshl_b32 s{sT3}, s{sJ}, 7")
    a(f"s_add_u32 s{sT2}, s{sT2}, s{sT3}")
    a(f"s_add_u32 s{sT2}, s{sT2}, {YPB}")
    a(f"s_lshr_b32 s{sT3}, s{sW}, 1")
    a(f"s_lshl_b32 s{sT3}, s{sT3}, 5")
    a(f"s_lshl_b32 s{sT4}, s{sC}, 7")
    a(f"s_add_u32 s{sT3}, s{sT3}, s{sT4}")
    a(f"s_add_u32 s{sT3}, s{sT3}, {CNB}")
    a(f"v_and_b32 v28, 28, v{vL4}")
    a("s_waitcnt lgkmcnt(0)")
    if opt.get("canb", True):
        Lsk = a.newlabel("SKC")
        a(f"s_cmp_eq_u32 s{sW}, 0")
        a(f"s_cbranch_scc1 {Lsk}")
        poll([f"buffer_load_dword v16, v28, {srd(SRD_WS)}, s{sT3} offen sc1"], [16], 15)
        a.label(Lsk)
    stamp(2, True)
    poll([
        f"buffer_load_dwordx4 v[20:23], v{vVo}, {srd(SRD_WS)}, s{sT1} offen sc1",
        f"buffer_load_dwordx4 v[24:27], v{vVo}, {srd(SRD_WS)}, s{sT1} offen offset:1024 sc1",
        f"buffer_load_dwordx4 v[16:19], v13, {srd(SRD_WS)}, s{sT0} offen sc1",
    ], list(range(16, 28)), 15)
    stamp(10, True)
    for cg in range(2):
        a(f"v_mfma_f32_16x16x32_bf16 {vr(VO+4*cg,4)}, v[20:23], {vr(VWA+8*cg,4)}, 0")
        a(f"v_mfma_f32_16x16x32_bf16 {vr(VO+4*cg,4)}, v[24:27], {vr(VWA+8*cg+4,4)}, {vr(VO+4*cg,4)}")
    a(f"v_max_f32 v28, v16, v18")
    a(f"v_max_f32_dpp v28, v28, v28 quad_perm:[1,0,3,2] {DPPX}")
    a(f"v_max_f32_dpp v28, v28, v28 quad_perm:[2,3,0,1] {DPPX}")
    a(f"v_sub_f32 v16, v16, v28")
    a(f"v_sub_f32 v18, v18, v28")
    a(f"v_exp_f32 v16, v16")
    a(f"v_exp_f32 v18, v18")
    a(f"v_mul_f32 v29, v16, v17")
    a(f"v_fmac_f32 v29, v18, v19")
    a(f"v_add_f32_dpp v29, v29, v29 quad_perm:[1,0,3,2] {DPPX}")
    a(f"v_add_f32_dpp v29, v29, v29 quad_perm:[2,3,0,1] {DPPX}")
    a(f"v_cndmask_b32_e64 v16, v16, v18, s[{sPC}:{sPC+1}]")
    a(f"v_rcp_f32 v29, v29")
    a(f"v_mul_f32 v16, v16, v29")
    for r in range(4):
        a(f"v_mov_b32_dpp v{20+r}, v16 quad_perm:[{r},{r},{r},{r}] {DPPX}")
    for cg in range(2):
        a(f"v_mul_f32 v{30+cg}, v20, v{VO+4*cg}")
    for r in range(1, 4):
        for cg in range(2):
            a(f"v_fmac_f32 v{30+cg}, v{20+r}, v{VO+4*cg+r}")
    a(f"ds_write_b32 v{VP}, v30 offset:{L_S3}")
    a(f"ds_write_b32 v{VP}, v31 offset:{L_S3+2048}")
    a("s_waitcnt lgkmcnt(0)")
    a("s_barrier")
    a(f"s_cmp_lg_u32 s{sW}, 0")
    a("s_cbranch_scc1 L_HOPE")
    for k in range(4):
        a(f"ds_read_b128 {vr(16+4*k,4)}, v{VP+1} offset:{L_S3+16*k}")
    a("s_waitcnt lgkmcnt(0)")
    for k in range(8):
        a(f"v_add_f32 v{16+k}, v{16+k}, v{24+k}")
    for k in range(4):
        a(f"v_add_f32 v{16+k}, v{16+k}, v{20+k}")
    a(f"v_add_f32 v16, v16, v18")
    a(f"v_add_f32 v17, v17, v19")
    a(f"v_add_f32 v16, v16, v17")
    swap_red("v_add_f32", [16], [17], 32)
    setbits(16)
    a(f"s_mov_b32 exec_hi, 0")
    a(f"buffer_store_dword v16, v{vL4}, {srd(SRD_WS)}, s{sT2} offen sc1")
    a(f"s_mov_b64 exec, -1")
    stamp(11, True)
    a("s_branch L_HOPE")

    a.label("L_S4")
    a(f"s_cmp_eq_u32 s{sIsFFN}, 0")
    a("s_cbranch_scc1 L_HOPE")
    Lw = a.newlabel("NOW")
    a(f"s_cmp_lg_u32 s{sLayer}, 0")
    a(f"s_cbranch_scc1 {Lw}")
    a(f"v_and_b32 v12, 7, v{vN}")
    a(f"v_lshl_add_u32 v12, v{vG}, 3, v12")
    a(f"v_lshlrev_b32 v12, 1, v12")
    a(f"s_lshl_b32 s{sT0}, s{sF}, 6")
    a(f"buffer_load_ushort v{vB1}, v12, {srd(SRD_B1)}, s{sT0} offen")
    a(f"v_lshlrev_b32 v13, 1, v{vLane}")
    a(f"s_lshl_b32 s{sT0}, s{sW}, 7")
    a(f"buffer_load_ushort v{vXres}, v13, {srd(SRD_X)}, s{sT0} offen")
    a(f"v_add_u32 v12, {L_W2}, v{vTr128}")
    a("s_waitcnt lgkmcnt(0)")
    for cg in range(4):
        a(f"ds_read_b64_tr_b16 {vr(VWB+4*cg,2)}, v12 offset:{cg*32}")
        a(f"ds_read_b64_tr_b16 {vr(VWB+4*cg+2,2)}, v12 offset:{cg*32+512}")
    a("s_waitcnt vmcnt(0) lgkmcnt(0)")
    a(f"v_lshlrev_b32 v{vB1}, 16, v{vB1}")
    a(f"v_lshlrev_b32 v{vXres}, 16, v{vXres}")
    Lx = a.newlabel("XOK")
    a(f"s_branch {Lx}")
    a.label(Lw)
    a(f"s_lshl_b32 s{sT0}, s{sW}, 8")
    a(f"s_add_u32 s{sT0}, s{sT0}, {YPB+8*2048}")
    poll([f"buffer_load_dword v{vXres}, v{vL4}, {srd(SRD_WS)}, s{sT0} offen sc1"], [vXres], 15)
    a.label(Lx)
    a(f"s_lshl_b32 s{sT4}, s{sW}, 8")
    a(f"s_add_u32 s{sT0}, s{sT4}, {YPB}")
    a(f"s_add_u32 s{sT1}, s{sT0}, 4096")
    a(f"s_add_u32 s{sT2}, s{sT0}, 8192")
    a(f"s_add_u32 s{sT3}, s{sT0}, 12288")
    a(f"s_add_u32 s{sT4}, s{sT4}, {FP0}")
    a(f"s_add_u32 s{sT5}, s{sT4}, {NF*2048}")
    a(f"s_lshl_b32 s{sT6}, s{sF}, 11")
    a(f"s_add_u32 s{sT4}, s{sT4}, s{sT6}")
    a(f"s_lshl_b32 s{sT6}, s{sW}, 2")
    a(f"s_add_u32 s{sT6}, s{sT6}, {L_H}")
    a(f"v_lshl_add_u32 v{VP}, v{vN}, 10, s{sT6}")
    a(f"v_lshl_add_u32 v{VP}, v{vG}, 7, v{VP}")
    a(f"s_lshl_b32 s{sT6}, s{sW}, 3")
    a(f"v_mov_b32 v{VP+1}, s{sT6}")
    a(f"v_and_b32 v12, 7, v{vN}")
    a(f"v_lshl_add_u32 v14, v{vG}, 3, v12")
    a(f"v_lshrrev_b32 v13, 3, v{vN}")
    a(f"v_lshlrev_b32 v13, 4, v13")
    a(f"v_lshl_add_u32 v{VP+2}, v14, 5, v13")
    a(f"v_lshlrev_b32 v{VP+3}, 3, v12")
    a(f"s_lshl_b32 s{sT6}, s{sW}, 7")
    a(f"s_add_u32 s{sT6}, s{sT6}, {L_XT}")
    a(f"v_lshl_add_u32 v{VP+4}, v14, 1, s{sT6}")
    a(f"v_lshl_add_u32 v{VP+5}, v{vG}, 4, s{sT6}")
    lds_ = []
    for c in range(8):
        lds_.append(f"buffer_load_dword v{16+c}, v{vL4}, {srd(SRD_WS)}, s{[sT0,sT1,sT2,sT3][c//2]} offen offset:{(c%2)*2048} sc1")
    poll(lds_, list(range(16, 24)), 15, sleep=opt.get("sleep_c", 0))
    stamp(10, True)
    for k in range(4):
        a(f"v_add_f32 v{16+k}, v{16+k}, v{20+k}")
    a(f"v_add_f32 v16, v16, v18")
    a(f"v_add_f32 v17, v17, v19")
    a(f"v_add_f32 v16, v16, v17")
    bf16round(16)
    a(f"v_add_f32 v16, v16, v{vXres}")
    a(f"v_cvt_pk_bf16_f32 v16, v16, v16")
    a(f"ds_write_b16 v{vXT}, v16")
    a(f"v_lshl_or_b32 v16, v16, 16, s{sBits}")
    Lp = a.newlabel("NOX1")
    a(f"s_cmp_lg_u32 s{sF}, 0")
    a(f"s_cbranch_scc1 {Lp}")
    a(f"buffer_store_dword v16, v{vL4}, {srd(SRD_WS)}, s{sT5} offen sc1")
    a.label(Lp)
    a("s_waitcnt lgkmcnt(0)")
    a(f"ds_read_b128 v[20:23], v{vXA}")
    a(f"ds_read_b128 v[24:27], v{vXA} offset:64")
    a("s_waitcnt lgkmcnt(1)")
    for cg in range(2):
        a(f"v_mfma_f32_16x16x32_bf16 {vr(VO+4*cg,4)}, {vr(VWA+8*cg,4)}, v[20:23], 0")
    a(f"v_mfma_f32_16x16x32_bf16 v[28:31], v[20:23], v[20:23], 0")
    a("s_waitcnt lgkmcnt(0)")
    for cg in range(2):
        a(f"v_mfma_f32_16x16x32_bf16 {vr(VO+4*cg,4)}, {vr(VWA+8*cg+4,4)}, v[24:27], {vr(VO+4*cg,4)}")
    a(f"v_mfma_f32_16x16x32_bf16 v[28:31], v[24:27], v[24:27], v[28:31]")
    a(f"s_mov_b64 exec, s[{sMn0}:{sMn0+1}]")
    for cg in range(2):
        a(f"ds_write2_b32 v{VP}, v{VO+4*cg}, v{VO+4*cg+1} offset0:{cg*128} offset1:{cg*128+8}")
        a(f"ds_write2_b32 v{VP}, v{VO+4*cg+2}, v{VO+4*cg+3} offset0:{cg*128+16} offset1:{cg*128+24}")
    a(f"s_mov_b64 exec, 1")
    a(f"ds_write_b64 v{VP+1}, v[28:29] offset:{L_ST}")
    a(f"s_mov_b64 exec, -1")
    a("s_waitcnt lgkmcnt(0)")
    a("s_barrier")
    a(f"ds_read_b64 v[16:17], v{VP+3} offset:{L_ST}")
    a(f"ds_read_b128 v[20:23], v{VP+2} offset:{L_H}")
    a(f"ds_read_b128 v[24:27], v{VP+2} offset:{L_H+1024}")
    a("s_waitcnt lgkmcnt(2)")
    for dpp in ("quad_perm:[1,0,3,2]", "quad_perm:[2,3,0,1]", "row_half_mirror"):
        a(f"v_add_f32_dpp v16, v16, v16 {dpp} {DPPX}")
        a(f"v_add_f32_dpp v17, v17, v17 {dpp} {DPPX}")
    ln_stats(16, 17)
    a("s_waitcnt lgkmcnt(0)")
    a(f"v_add_f32 v20, v20, v21")
    a(f"v_add_f32 v22, v22, v23")
    a(f"v_add_f32 v24, v24, v25")
    a(f"v_add_f32 v26, v26, v27")
    a(f"v_add_f32 v20, v20, v22")
    a(f"v_add_f32 v24, v24, v26")
    a(f"v_fma_f32 v20, -v17, v24, v20")
    a(f"v_add_f32_dpp v20, v20, v20 row_ror:8 {DPPX}")
    a(f"v_mul_f32 v20, v16, v20")
    bf16round(20)
    a(f"v_add_f32 v20, v20, v{vB1}")
    bf16round(20)
    k0 = 0.7978845608028654
    k1 = 0.044715
    l2e = 1.4426950408889634
    a(f"v_mul_f32 v21, v20, v20")
    a(f"v_mov_b32 v22, {f32(-2*l2e*k0)}")
    a(f"v_fmac_f32 v22, {f32(-2*l2e*k0*k1)}, v21")
    a(f"v_mul_f32 v22, v22, v20")
    a(f"v_exp_f32 v22, v22")
    a(f"v_add_f32 v22, 1.0, v22")
    a(f"v_rcp_f32 v22, v22")
    a(f"v_mul_f32 v20, v20, v22")
    a(f"v_cvt_pk_bf16_f32 v20, v20, v20")
    a(f"ds_write_b16 v{VP+4}, v20")
    a("s_waitcnt lgkmcnt(0)")
    a(f"ds_read_b128 v[20:23], v{VP+5}")
    a("s_waitcnt lgkmcnt(0)")
    for cg in range(4):
        a(f"v_mfma_f32_16x16x32_bf16 {vr(VO+4*cg,4)}, v[20:23], {vr(VWB+4*cg,4)}, 0")
    a(f"v_cndmask_b32_e64 v16, v{VO}, v{VO+4}, s[{sMg1}:{sMg1+1}]")
    a(f"v_cndmask_b32_e64 v16, v16, v{VO+8}, s[{sMg2}:{sMg2+1}]")
    a(f"v_cndmask_b32_e64 v16, v16, v{VO+12}, s[{sMg3}:{sMg3+1}]")
    setbits(16)
    a(f"buffer_store_dword v16, v{vL4}, {srd(SRD_WS)}, s{sT4} offen sc1")
    stamp(11, True)

    a.label("L_HOPE")
    Lgo = a.newlabel("GOE")
    a(f"s_cmp_eq_u32 s{sLayer}, 0")
    a(f"s_cbranch_scc1 {Lgo}")
    a(f"s_cmp_ge_u32 s{sU}, 8")
    a("s_cbranch_scc1 L_FIN")
    a.label(Lgo)
    a(f"v_lshlrev_b32 v13, 1, v{vLane}")
    a(f"s_lshl_b32 s{sT0}, s{sS}, 7")
    a(f"buffer_load_ushort v{vB2}, v13, {srd(SRD_B2)}, s{sT0} offen")
    a(f"s_lshl_b32 s{sT0}, s{sW}, 11")
    a(f"s_lshl_b32 s{sT1}, s{sS}, 8")
    a(f"s_add_u32 s{sT1}, s{sT1}, {FP0}")
    a(f"s_add_u32 s{sT0}, s{sT0}, s{sT1}")
    a(f"s_add_u32 s{sT1}, s{sT1}, {NF*2048}")
    a(f"s_add_u32 s{sT2}, s{sT0}, {40*2048}")
    a(f"s_cmp_lt_u32 s{sW}, 3")
    a(f"s_cselect_b32 s{sT2}, s{sT2}, s{sT0}")
    a(f"s_cselect_b32 s{sT3}, {f32(1.0)}, 0")
    for i in range(1, 5):
        a(f"v_add_u32 v{23+i}, {i*8*2048}, v{vL4}")
    a(f"s_lshl_b32 s{sT4}, s{sW}, 2")
    a(f"v_lshl_add_u32 v{VP}, v{vLane}, 5, s{sT4}")
    a(f"v_lshlrev_b32 v{VP+1}, 5, v{vLane}")
    Lc = a.newlabel("CAN")
    a(f"s_cmp_lg_u32 s{sW}, 0")
    a(f"s_cbranch_scc1 {Lc}")
    a(f"s_lshl_b32 s{sT4}, s{sH}, 12")
    a(f"s_add_u32 s{sT4}, s{sT4}, {CSB}")
    poll([f"buffer_load_dword v22, v{vL4}, {srd(SRD_WS)}, s{sT1} offen sc1"], [22], 15, sleep=opt.get("sleep_e", 1))
    a(f"s_cmp_lg_u32 s{sLayer}, 0")
    a(f"s_cbranch_scc1 {Lc}")
    for k in range(4):
        a(f"buffer_load_dwordx4 {vr(VSC+4*k,4)}, v{vVo}, {srd(SRD_WS)}, s{sT4} offen offset:{1024*k} sc1")
    a.label(Lc)
    if opt.get("canary", True):
        a("s_barrier")
    lds_ = []
    for i in range(5):
        lds_.append(f"buffer_load_dword v{16+i}, v{vL4 if i == 0 else 23+i}, {srd(SRD_WS)}, s{sT0} offen sc1")
    lds_ += [f"buffer_load_dword v21, v{vL4}, {srd(SRD_WS)}, s{sT2} offen sc1",
             f"buffer_load_dword v22, v{vL4}, {srd(SRD_WS)}, s{sT1} offen sc1"]
    poll(lds_, list(range(16, 23)), 15)
    stamp(12, True)
    a(f"v_add_f32 v16, v16, v17")
    a(f"v_add_f32 v18, v18, v19")
    a(f"v_fmac_f32 v20, s{sT3}, v21")
    a(f"v_add_f32 v16, v16, v18")
    a(f"v_add_f32 v16, v16, v20")
    a(f"ds_write_b32 v{VP}, v16 offset:{L_E}")
    a(f"v_lshlrev_b32 v13, 16, v{vB2}")
    a(f"s_lshl_b32 s{sT0}, s{sW}, 6")
    a(f"s_lshl_b32 s{sT1}, s{sU}, 9")
    a(f"s_add_u32 s{sT0}, s{sT0}, s{sT1}")
    a("s_waitcnt lgkmcnt(0)")
    a("s_barrier")
    a(f"ds_read_b128 v[24:27], v{VP+1} offset:{L_E}")
    a(f"ds_read_b128 v[28:31], v{VP+1} offset:{L_E+16}")
    a("s_waitcnt lgkmcnt(0)")
    for k in range(4):
        a(f"v_add_f32 v{24+k}, v{24+k}, v{28+k}")
    a(f"v_add_f32 v24, v24, v26")
    a(f"v_add_f32 v25, v25, v27")
    a(f"v_add_f32 v16, v24, v25")
    bf16round(16)
    a(f"v_add_f32 v16, v16, v13")
    bf16round(16)
    a(f"v_and_b32 v22, -4, v22")
    a(f"v_add_f32 v16, v16, v22")
    a(f"v_cvt_pk_bf16_f32 v16, v16, v16")
    a(f"s_cmp_lg_u32 s{sLayer}, 0")
    a("s_cbranch_scc1 L_OUT")
    a(f"ds_write_b16 v{vXT}, v16")
    a("s_waitcnt lgkmcnt(0)")
    a(f"ds_read_b128 v[20:23], v{vXA}")
    a(f"ds_read_b128 v[24:27], v{vXA} offset:64")
    a("s_waitcnt lgkmcnt(1)")
    a(f"v_mfma_f32_16x16x32_bf16 {vr(VO,4)}, v[20:23], {vr(VWQ,4)}, 0")
    a(f"v_mfma_f32_16x16x32_bf16 v[28:31], v[20:23], v[20:23], 0")
    a("s_waitcnt lgkmcnt(0)")
    a(f"v_mfma_f32_16x16x32_bf16 {vr(VO,4)}, v[24:27], {vr(VWQ+4,4)}, {vr(VO,4)}")
    a(f"v_mfma_f32_16x16x32_bf16 v[28:31], v[24:27], v[24:27], v[28:31]")
    a(f"v_and_b32 v{VO}, -4, v{VO}")
    a(f"s_mov_b64 exec, s[{sM16}:{sM16+1}]")
    fast_store([f"buffer_store_dword v{VO}, v{vL4}, {srd(SRD_WS)}, s{sT0} offen"])
    a(f"s_mov_b64 exec, -1")
    stamp(13, True)
    a(f"s_mov_b32 s{sLayer}, 1")
    a(f"s_mov_b32 s{sMask}, 2")
    a(f"s_mov_b32 s{sBits}, 0")
    a(f"s_cmp_eq_u32 s{sW}, 0")
    a(f"s_cbranch_scc1 L_HOPA")
    a(f"s_cmp_lg_u32 s{sW}, 1")
    a(f"s_cbranch_scc1 L_QBAR")
    a(f"s_lshl_b32 s{sT0}, s{sU}, 3")
    a(f"s_add_u32 s{sT0}, s{sT0}, {STB}")
    setbits(28)
    setbits(29)
    a(f"s_mov_b64 exec, 1")
    fast_store([f"buffer_store_dwordx2 v[28:29], v{vL4}, {srd(SRD_WS)}, s{sT0} offen"])
    a(f"s_mov_b64 exec, -1")
    a(f"s_cmp_ge_u32 s{sU}, 8")
    a(f"s_cbranch_scc1 L_QBAR")
    a(f"v_lshlrev_b32 v16, 16, v16")
    a(f"s_lshl_b32 s{sT0}, s{sS}, 8")
    a(f"s_add_u32 s{sT0}, s{sT0}, {YPB + 8*2048}")
    a(f"buffer_store_dword v16, v{vL4}, {srd(SRD_WS)}, s{sT0} offen sc1")
    a("s_branch L_QBAR")
    a.label("L_HOPA")
    sum4x4(VCS, VSC)
    a(f"v_and_b32 v14, 7, v{vLane}")
    a(f"v_lshlrev_b32 v14, 3, v14")
    a(f"s_lshl_b32 s{sT0}, s{sH}, 12")
    a(f"s_lshl_b32 s{sT1}, s{sH}, 6")
    a(f"s_add_u32 s{sT1}, s{sT1}, {STB}")
    a(f"v_and_b32 v12, 31, v{vLane}")
    a(f"v_lshlrev_b32 v12, 3, v12")
    poll([f"buffer_load_dwordx2 v[16:17], v14, {srd(SRD_WS)}, s{sT1} offen sc1"] +
         [f"buffer_load_dwordx4 {vr(VO+4*k,4)}, v{vVo}, {srd(SRD_WS)}, s{sT0} offen offset:{1024*k} sc1" for k in range(4)],
         [16, 17] + list(range(VO, VO + 16)), 13)
    stamp(5, True)
    for dpp in ("quad_perm:[1,0,3,2]", "quad_perm:[2,3,0,1]", "row_half_mirror"):
        a(f"v_add_f32_dpp v16, v16, v16 {dpp} {DPPX}")
        a(f"v_add_f32_dpp v17, v17, v17 {dpp} {DPPX}")
    ln_stats(16, 17)
    sum4x4(20)
    for r in range(4):
        a(f"v_fma_f32 v{20+r}, -v17, v{VCS+r}, v{20+r}")
    for r in range(4):
        a(f"v_mul_f32 v{20+r}, v16, v{20+r}")
    a(f"v_cvt_pk_bf16_f32 v20, v20, v21")
    a(f"v_cvt_pk_bf16_f32 v21, v22, v23")
    a(f"ds_write_b64 v12, v[20:21] offset:{L_Q}")
    a("s_waitcnt lgkmcnt(0)")
    a("s_branch L_QBAR")

    a.label("L_OUT")
    a(f"s_cmp_lg_u32 s{sW}, 0")
    a("s_cbranch_scc1 L_FIN")
    a(f"v_lshlrev_b32 v12, 1, v{vLane}")
    a(f"s_lshl_b32 s{sT0}, s{sS}, 7")
    a(f"buffer_store_short v16, v12, {srd(SRD_OUT)}, s{sT0} offen")
    Lne = a.newlabel("NOEP")
    a(f"s_cmp_lg_u32 s{sU}, 0")
    a(f"s_cbranch_scc1 {Lne}")
    a(f"v_mov_b32 v12, {EPB}")
    a(f"v_mov_b32 v13, s{sEp}")
    a(f"s_mov_b64 exec, 1")
    a(f"buffer_store_dword v13, v12, {srd(SRD_WS)}, 0 offen sc1")
    a(f"s_mov_b64 exec, -1")
    a.label(Lne)
    stamp(13, True)
    a.label("L_FIN")
    if stamps:
        stamp(31)
        a(f"s_lshl_b32 s{sT0}, s2, 10")
        a(f"s_lshl_b32 s{sT1}, s{sW}, 7")
        a(f"s_add_u32 s{sT0}, s{sT0}, s{sT1}")
        a(f"s_add_u32 s{sT0}, s{sT0}, {STAMP}")
        a(f"s_mov_b32 exec_hi, 0")
        a(f"buffer_store_dword v{vStamp}, v{vL4}, {srd(SRD_WS)}, s{sT0} offen")
    a.label("L_END")
    a("s_endpgm")
    a.raw('.section .rodata,"a"')
    a.raw(".p2align 6")
    a.raw(f".amdhsa_kernel {NAME}_kernel")
    a.raw("  .amdhsa_next_free_vgpr 256")
    a.raw("  .amdhsa_next_free_sgpr 102")
    a.raw("  .amdhsa_accum_offset 256")
    a.raw("  .amdhsa_group_segment_fixed_size 0")
    a.raw("  .amdhsa_kernarg_size 104")
    a.raw("  .amdhsa_user_sgpr_count 2")
    a.raw("  .amdhsa_user_sgpr_kernarg_segment_ptr 1")
    a.raw("  .amdhsa_system_sgpr_workgroup_id_x 1")
    a.raw(".end_amdhsa_kernel")
    return a.text()


if __name__ == "__main__":
    open("k7.s", "w").write(gen(False))
    open("k7s.s", "w").write(gen(True))
    ex = {
      "z_c0": dict(cap=0), "z_c6": dict(cap=6), "z_c0w3": dict(cap=0, trigw=3),
      "z_c0_lo2": dict(cap=0, loadonly=2), "z_c4_lo2": dict(cap=4, loadonly=2), "z_c6_lo2": dict(cap=6, loadonly=2),
      "z_c0_lo1": dict(cap=0, loadonly=1), "z_nofast": dict(nofast=True),
    }
    for k, v in ex.items():
        open(k + ".s", "w").write(gen(True, None, v))
```

```python
import sys, struct
from emit import Asm

NAME = "interleave_layers__mha_block_cached__dense_activation_gelu__decode"
HEADER = open("cdna_kernels/" + NAME + ".s.ref").read().split("; Override launch")[0]


def f32(x):
    return "0x%08x" % struct.unpack("<I", struct.pack("<f", x))[0]


QPB = 0x00000
CSB = 0x20000
G = 0x40000
OPB = G
STB = G + 0x20000
MLB = G + 0x20800
CNB = G + 0x21000
YPB = G + 0x22000
FP0 = G + 0x26800
assert FP0 + 44 * 2048 <= G + 0x40000
FLB = 0x80000
EPB = 0x89000
QGB = 0xC0000
NF = 43
STAMP = 0x8000000

L_Q = 0x0000
L_FLAG = 0x0100
L_ACK = 0x0110
L_ONES = 0x0180
L_M = 0x0200
L_L = 0x0240
L_O = 0x0400
L_S3 = 0x1400
L_XT = 0x2400
L_H = 0x2800
L_ST = 0x3000
L_E = 0x3100
L_WQ = 0x4000
L_WA = 0x8000
L_W2 = 0x10000
LDS_BYTES = 0x18000

SRD_K, SRD_V, SRD_WQ, SRD_WO, SRD_W1, SRD_W2, SRD_WS, SRD_X, SRD_B1, SRD_B2, SRD_OUT, SRD_DBG = [32 + 4 * i for i in range(12)]
sC, sJ, sU, sH, sS, sW, sF, sIsS3, sIsFFN, sFast, sTO, sKV, sLayer = range(80, 93)
sT0, sT1, sT2, sT3 = 93, 94, 95, 96
sMask = 97
sBits = 98
sT4 = 100
sEp = 28
sPermLo, sPermHi = 14, 15
sScale = 30
sM16 = 4
sMg1 = 6
sMg2 = 8
sMg3 = 10
sPC = 12
sStampT = 18
sMn0 = 20
sT5, sT6, sT7 = 22, 23, 24
sFirst = 26


def srd(n):
    return f"s[{n}:{n+3}]"


vLane, vN, vG, vKo, vVo = 1, 2, 3, 4, 5
vTr64 = 6
vTr128 = 7
vTr256 = 8
vXA = 9
vL4 = 10
vStamp = 11
VK = 32
VS0, VS1, VTA = 96, 128, 160
VQB = 192
VSC = 208
VO = 192
VP = 224
VLA = 232
VONE = 236
VWQ = 240
VCS = 248
vB1, vB2, vXres, vXT = 252, 253, 254, 255
VWA, VWB = 128, 144

DPPX = "row_mask:0xf bank_mask:0xf"


def vr(b, n):
    return f"v[{b}:{b+n-1}]" if n > 1 else f"v{b}"


def gen(stamps=False, dbg=None, opt=None):
    opt = opt or {}
    a = Asm()
    a.raw(HEADER.rstrip("\n"))
    a.raw(f"; @launch grid=(256,1,1) block=(512,1,1) lds={LDS_BYTES}")
    a.raw('.amdgcn_target "amdgcn-amd-amdhsa--gfx950"')
    a.raw(".text")
    a.raw(f".globl {NAME}_kernel")
    a.raw(".p2align 8")
    a.raw(f".type {NAME}_kernel,@function")
    a.raw(f"{NAME}_kernel:")

    def stamp(k, layered=False):
        if not stamps:
            return
        a(f"s_memrealtime s[{sStampT}:{sStampT+1}]")
        a("s_waitcnt lgkmcnt(0)")
        if layered:
            a(f"s_lshl_b32 s{sStampT+1}, s{sLayer}, 4")
            a(f"s_add_u32 s{sStampT+1}, s{sStampT+1}, {k}")
            a(f"s_mov_b32 m0, s{sStampT+1}")
            a(f"v_writelane_b32 v{vStamp}, s{sStampT}, m0")
        else:
            a(f"v_writelane_b32 v{vStamp}, s{sStampT}, {k}")

    def ortree(rs, tmp):
        if len(rs) == 1:
            return rs[0]
        if len(rs) >= 3:
            a(f"v_or3_b32 v{tmp}, v{rs[0]}, v{rs[1]}, v{rs[2]}")
            i = 3
        else:
            a(f"v_or_b32 v{tmp}, v{rs[0]}, v{rs[1]}")
            i = 2
        while i < len(rs):
            if i + 1 < len(rs):
                a(f"v_or3_b32 v{tmp}, v{tmp}, v{rs[i]}, v{rs[i+1]}")
                i += 2
            else:
                a(f"v_or_b32 v{tmp}, v{tmp}, v{rs[i]}")
                i += 1
        return tmp

    def setbits(v):
        a(f"v_and_or_b32 v{v}, v{v}, -4, s{sBits}")

    def poll(loads, regs, tmp, sleep=0):
        L = a.newlabel("POLL")
        D = a.newlabel("PDONE")
        a.label(L)
        for ld in loads:
            a(ld)
        a("s_waitcnt vmcnt(0)")
        cur = ortree(list(regs), tmp)
        a(f"v_and_b32 v{tmp}, s{sMask}, v{cur}")
        a(f"v_cmp_ne_u32 vcc, 0, v{tmp}")
        a(f"s_cbranch_vccz {D}")
        if sleep:
            a(f"s_sleep {sleep}")
        a(f"s_add_u32 s{sTO}, s{sTO}, 1")
        a(f"s_cmp_lt_u32 s{sTO}, 40000")
        a(f"s_cbranch_scc1 {L}")
        a.label(D)

    def fast_store(instr):
        Ls = a.newlabel("SLOW")
        Le = a.newlabel("SEND")
        a(f"s_cmp_eq_u32 s{sFast}, 0")
        a(f"s_cbranch_scc1 {Ls}")
        for i in instr:
            a(i)
        a(f"s_branch {Le}")
        a.label(Ls)
        for i in instr:
            a(i + (" sc1" if i.startswith("buffer") else ""))
        a.label(Le)

    def bf16round(v):
        a(f"v_cvt_pk_bf16_f32 v{v}, v{v}, v{v}")
        a(f"v_lshlrev_b32 v{v}, 16, v{v}")

    def ln_stats(vss, vs):
        a(f"v_mul_f32 v{vs}, {f32(1/512)}, v{vs}")
        a(f"v_mul_f32 v{vss}, {f32(1/512)}, v{vss}")
        a(f"v_fma_f32 v{vss}, -v{vs}, v{vs}, v{vss}")
        a(f"v_max_f32 v{vss}, 0, v{vss}")
        a(f"v_add_f32 v{vss}, {f32(1e-5)}, v{vss}")
        a(f"v_rsq_f32 v{vss}, v{vss}")

    def swap_red(op, regs, tmps, which):
        for r, t in zip(regs, tmps):
            a(f"v_mov_b32 v{t}, v{r}")
        for r, t in zip(regs, tmps):
            a(f"v_permlane{which}_swap_b32 v{r}, v{t}")
        for r, t in zip(regs, tmps):
            a(f"{op} v{r}, v{r}, v{t}")

    a("s_cmp_ge_u32 s2, 256")
    a("s_cbranch_scc1 L_END")
    if stamps:
        a(f"s_memrealtime s[{sFirst}:{sFirst+1}]")
    for n, off in ((SRD_WQ, 24), (SRD_X, 0), (SRD_K, 8), (SRD_WS, 96), (SRD_V, 16)):
        a(f"s_load_dwordx2 s[{n}:{n+1}], s[0:1], {off}")
    a(f"v_lshrrev_b32 v{vLane}, 6, v0")
    a(f"s_and_b32 s{sC}, s2, 7")
    a(f"v_readfirstlane_b32 s{sW}, v{vLane}")
    a(f"s_lshr_b32 s{sJ}, s2, 3")
    a(f"s_lshl_b32 s{sU}, s{sC}, 5")
    a(f"s_add_u32 s{sU}, s{sU}, s{sJ}")
    a(f"s_lshr_b32 s{sH}, s{sU}, 3")
    a(f"s_and_b32 s{sS}, s{sU}, 7")
    a(f"v_and_b32 v{vLane}, 63, v0")
    a(f"v_and_b32 v{vN}, 15, v0")
    a(f"v_bfe_u32 v{vG}, v0, 4, 2")
    a(f"v_and_b32 v12, 3, v{vN}")
    a(f"v_lshlrev_b32 v12, 10, v12")
    a(f"v_lshrrev_b32 v13, 2, v{vN}")
    a(f"v_lshl_add_u32 v12, v13, 8, v12")
    a(f"v_lshl_add_u32 v{vKo}, v{vG}, 4, v12")
    a(f"v_lshlrev_b32 v{vVo}, 4, v{vLane}")
    a(f"v_lshlrev_b32 v{vL4}, 2, v{vLane}")
    a(f"s_lshl_b32 s{sKV}, s{sU}, 17")
    a(f"s_lshl_b32 s{sT0}, s{sW}, 14")
    a(f"s_add_u32 s{sKV}, s{sKV}, s{sT0}")
    a(f"s_cmp_lt_u32 s{sJ}, 16")
    a(f"s_cselect_b32 s{sIsS3}, 1, 0")
    a(f"s_cselect_b32 s{SRD_WO+2}, 0x400000, 0")
    a(f"s_min_u32 s{sF}, s{sC}, 3")
    a(f"s_mul_i32 s{sT0}, s{sC}, 5")
    a(f"s_add_u32 s{sF}, s{sF}, s{sT0}")
    a(f"s_add_u32 s{sF}, s{sF}, s{sJ}")
    a(f"s_sub_u32 s{sF}, s{sF}, 16")
    a(f"s_cmp_lt_u32 s{sC}, 3")
    a(f"s_cselect_b32 s{sT0}, 6, 5")
    a(f"s_sub_u32 s{sT1}, s{sJ}, 16")
    a(f"s_cmp_lt_u32 s{sT1}, s{sT0}")
    a(f"s_cselect_b32 s{sIsFFN}, 1, 0")
    a(f"s_cselect_b32 s{sF}, s{sF}, 0")
    a(f"s_cselect_b32 s{SRD_W1+2}, {512*2752}, 0")
    a(f"s_cselect_b32 s{SRD_W2+2}, {1376*1024}, 0")
    for n, size in ((SRD_K, 0x2000000), (SRD_V, 0x2000000), (SRD_WQ, 0x400000), (SRD_WS, 0x10000000), (SRD_X, 1024),
                    (SRD_B1, 2752), (SRD_B2, 1024), (SRD_OUT, 1024)):
        a(f"s_mov_b32 s{n+2}, {size}")
    for i in range(11):
        a(f"s_mov_b32 s{32+4*i+3}, 0x20000")
    a(f"s_mov_b32 s{sTO}, 0")
    a(f"s_mov_b32 s{sLayer}, 0")
    a(f"s_mov_b32 s{sFast}, 0")
    a(f"v_mov_b32 v{vStamp}, 0")
    a(f"v_lshlrev_b32 v16, 13, v{vG}")
    a(f"v_lshl_add_u32 v16, v{vN}, 4, v16")
    a(f"s_lshl_b32 s{sT0}, s{sS}, 19")
    a(f"s_lshl_b32 s{sT1}, s{sH}, 8")
    a(f"s_add_u32 s{sT0}, s{sT0}, s{sT1}")
    a(f"v_lshlrev_b32 v17, 4, v{vG}")
    a(f"s_lshl_b32 s{sT1}, s{sS}, 7")
    a("s_waitcnt lgkmcnt(0)")
    for n, off in ((SRD_WO, 32), (SRD_W1, 48), (SRD_W2, 64), (SRD_B1, 56), (SRD_B2, 72), (SRD_OUT, 80)):
        a(f"s_load_dwordx2 s[{n}:{n+1}], s[0:1], {off}")
    a(f"s_cmp_lg_u32 s{sW}, 0")
    a("s_cbranch_scc1 L_NOTW0")
    a(f"v_mov_b32 v18, {EPB}")
    a(f"buffer_load_dwordx2 {vr(VCS,2)}, v18, {srd(SRD_WS)}, 0 offen sc1")
    for i in range(16):
        a(f"s_mov_b32 m0, {L_WQ + i*1024}")
        a(f"buffer_load_dwordx4 v16, {srd(SRD_WQ)}, s{sT0} offen nt lds")
        a(f"s_add_u32 s{sT0}, s{sT0}, {4*8192}")
    a(f"buffer_load_dwordx4 v[20:23], v17, {srd(SRD_X)}, s{sT1} offen")
    a(f"buffer_load_dwordx4 v[24:27], v17, {srd(SRD_X)}, s{sT1} offen offset:64")
    a(f"buffer_load_dwordx4 v[28:31], v{vVo}, {srd(SRD_X)}, 0 offen")
    a("s_branch L_COMMON")
    a.label("L_NOTW0")
    a(f"s_cmp_lg_u32 s{sW}, 1")
    a("s_cbranch_scc1 L_NOTW1")
    a(f"v_mov_b32 v18, {EPB}")
    a(f"buffer_load_dwordx2 {vr(VCS,2)}, v18, {srd(SRD_WS)}, 0 offen sc1")
    a(f"v_mov_b32 v17, 0")
    a(f"ds_write_b32 v17, v17 offset:{L_ACK}")
    a("s_waitcnt lgkmcnt(0)")
    a(f"s_cmp_lt_u32 s{sJ}, 28")
    a("s_cbranch_scc1 L_COMMON")
    for i in range(4):
        a(f"v_mov_b32 v{12+i}, -1")
    a(f"s_lshl_b32 s{sT0}, s{sC}, 2")
    a(f"s_add_u32 s{sT0}, s{sT0}, s{sJ}")
    a(f"s_lshl_b32 s{sT0}, s{sT0}, 13")
    a(f"s_add_u32 s{sT0}, s{sT0}, {G - 28*8192}")
    a(f"s_add_u32 s{sT1}, s{sT0}, 4096")
    for i in range(0 if opt.get("noclr") else 8):
        a(f"buffer_store_dwordx4 v[12:15], v{vVo}, {srd(SRD_WS)}, s{sT0 if i < 4 else sT1} offen offset:{(i%4)*1024} sc1")
    a("s_branch L_COMMON")
    a.label("L_NOTW1")
    if opt.get("codepf", True):
        a(f"s_cmp_lg_u32 s{sW}, 2")
        a("s_cbranch_scc1 L_COMMON")
        a(f"s_cmp_ge_u32 s{sJ}, 2")
        a("s_cbranch_scc1 L_COMMON")
        a(f"s_getpc_b64 s[{sPC}:{sPC+1}]")
        a.label("L_PC")
        a(f"v_mov_b32 v16, v{vVo}")
        for i in range(opt.get("codekb", 10)):
            a(f"v_min_u32 v17, L_END-L_PC-12, v16")
            a(f"global_load_dwordx4 {vr(VP,4)}, v17, s[{sPC}:{sPC+1}]")
            a(f"v_add_u32 v16, 1024, v16")
    a.label("L_COMMON")
    if stamps:
        a(f"v_writelane_b32 v{vStamp}, s{sFirst}, 15")
    a(f"s_mov_b32 s{sPermLo}, 0x05040100")
    a(f"s_mov_b32 s{sPermHi}, 0x07060302")
    a(f"s_mov_b32 s{sScale}, {f32(1.4426950408889634 / 128 ** 0.5)}")
    a(f"s_mov_b64 s[{sM16}:{sM16+1}], 0xffff")
    a(f"s_mov_b32 s{sMg1}, 0xffff0000")
    a(f"s_mov_b32 s{sMg1+1}, 0")
    a(f"s_mov_b32 s{sMg2}, 0")
    a(f"s_mov_b32 s{sMg2+1}, 0xffff")
    a(f"s_mov_b32 s{sMg3}, 0")
    a(f"s_mov_b32 s{sMg3+1}, 0xffff0000")
    a(f"s_mov_b32 s{sMn0}, 0x00030003")
    a(f"s_mov_b32 s{sMn0+1}, 0x00030003")
    a(f"s_mov_b32 s{sMask}, 1")
    a(f"s_mov_b32 s{sBits}, 2")
    a(f"s_cmp_eq_u32 s{sW}, 0")
    a("s_cbranch_scc1 L_BULK")
    a("s_barrier")

    def mktag():
        a(f"v_readfirstlane_b32 s{sEp}, v{VCS}")
        a(f"v_readfirstlane_b32 s{sEp+1}, v{VCS+1}")
        a(f"s_getreg_b32 s{sT2}, hwreg(HW_REG_XCC_ID, 0, 4)")
        a(f"s_add_u32 s{sEp}, s{sEp}, 1")
        a(f"s_and_b32 s{sT3}, s{sEp+1}, 0xffffff00")
        a(f"s_or_b32 s{sT2}, s{sT2}, s{sT3}")
        a(f"s_mov_b32 s{sEp+1}, s{sEp}")
    Lb1 = a.newlabel("B1")
    a(f"s_cmp_lg_u32 s{sW}, 1")
    a(f"s_cbranch_scc1 {Lb1}")
    a("s_waitcnt vmcnt(0)")
    mktag()
    a(f"v_mov_b32 v18, s{sEp}")
    a(f"v_mov_b32 v19, s{sT2}")
    a(f"s_lshl_b32 s{sT0}, s{sU}, 7")
    a(f"s_add_u32 s{sT0}, s{sT0}, {FLB}")
    a(f"s_mov_b64 exec, 1")
    if not opt.get("nofl"): a(f"buffer_store_dwordx2 v[18:19], v{vL4}, {srd(SRD_WS)}, s{sT0} offen sc1")
    a(f"s_mov_b64 exec, -1")
    stamp(20)
    a.label(Lb1)

    def bulk(cap, trig=False):
        n = 0
        if trig and not cap: a("s_setprio 2")
        for T in range(4):
            a(f"s_add_u32 s{sT0}, s{sKV}, {T*4096}")
            for j in range(4):
                if cap and n >= cap:
                    a(f"s_waitcnt vmcnt({cap-1})")
                n += 1
                if opt.get("kcontig"):
                    a(f"buffer_load_dwordx4 {vr(VK+16*T+4*j,4)}, v{vVo}, {srd(SRD_K)}, s{sT0} offen offset:{1024*j} nt")
                else:
                    a(f"buffer_load_dwordx4 {vr(VK+16*T+4*j,4)}, v{vKo}, {srd(SRD_K)}, s{sT0} offen offset:{64*j} nt")
        for b in range(2):
            for i in range(8):
                if trig and not cap and i == 0: a(f"s_setprio {1-b}")
                if trig and n == opt.get("trig", 16):
                    Lt = a.newlabel("NT")
                    a(f"s_cmp_lg_u32 s{sW}, {opt.get('trigw', 7)}")
                    a(f"s_cbranch_scc1 {Lt}")
                    a(f"v_mov_b32 v17, 0")
                    a(f"v_mov_b32 v18, 1")
                    a(f"ds_write_b32 v17, v18 offset:{L_ACK}")
                    a.label(Lt)
                if i % 4 == 0:
                    a(f"s_add_u32 s{sT0}, s{sKV}, {b*8192 + (i//4)*4096}")
                base = (VS0 if b == 0 else VS1) + 4 * i
                if cap and n < opt.get("capn", 24):
                    a(f"s_waitcnt vmcnt({cap-1})")
                n += 1
                a(f"buffer_load_dwordx4 {vr(base,4)}, v{vVo}, {srd(SRD_V)}, s{sT0} offen offset:{(i%4)*1024} nt")
    bulk(opt.get("cap", 4), True)
    a("s_branch L_BULKD")
    a.label("L_BULK")
    bulk(0)
    a.label("L_BULKD")
    NAFTER = 0
    a(f"s_lshl_b32 s{sT2}, s{sW}, 12")
    a(f"v_lshrrev_b32 v12, 2, v{vN}")
    a(f"v_lshl_add_u32 v12, v{vG}, 3, v12")
    a(f"v_and_b32 v13, 3, v{vN}")
    a(f"v_lshlrev_b32 v13, 3, v13")
    a(f"v_lshl_add_u32 v{vTr64}, v12, 6, v13")
    a(f"v_lshl_add_u32 v{vTr128}, v12, 7, v13")
    a(f"v_lshl_add_u32 v{vTr256}, v12, 8, v13")
    a(f"v_add_u32 v{vTr64}, s{sT2}, v{vTr64}")
    a(f"v_add_u32 v{vTr128}, s{sT2}, v{vTr128}")
    for i in range(4):
        a(f"v_mov_b32 v{VONE+i}, 0x3f803f80")
    a(f"s_lshl_b32 s{sT0}, s{sW}, 7")
    a(f"s_add_u32 s{sT0}, s{sT0}, {L_XT}")
    a(f"v_lshl_add_u32 v12, v{vG}, 4, s{sT0}")
    a(f"v_lshl_add_u32 v{vXT}, v{vLane}, 1, s{sT0}")
    a(f"v_mov_b32 v13, {L_ONES}")
    a(f"v_cmp_eq_u32 vcc, 1, v{vN}")
    a(f"v_cndmask_b32 v{vXA}, v12, v13, vcc")
    stamp(3)
    if opt.get("loadonly"):
        Lx_ = a.newlabel("LO")
        a(f"s_cmp_lg_u32 s{sW}, 0")
        a(f"s_cbranch_scc1 {Lx_}")
        a("s_barrier")
        if opt["loadonly"] == 2:
            a("s_branch L_SVC")
        a.label(Lx_)
        a("s_waitcnt vmcnt(0)")
        stamp(14)
        a("s_branch L_FIN")
    a(f"s_cmp_lg_u32 s{sW}, 0")
    a("s_cbranch_scc1 L_QBAR")
    a("s_barrier")
    a.label("L_SVC")
    a("s_setprio 3")
    a(f"s_mov_b64 exec, 0xff")
    a(f"ds_write_b128 v{vVo}, {vr(VONE,4)} offset:{L_ONES}")
    a(f"s_mov_b64 exec, -1")
    a(f"s_waitcnt vmcnt(32)")
    stamp(16)
    a(f"v_cmp_eq_u32 vcc, 1, v{vN}")
    for i in range(8):
        a(f"v_cndmask_b32 v{20+i}, v{20+i}, v{VONE}, vcc")
    a(f"v_mov_b32 v16, 0")
    a(f"v_mov_b32 v17, 0")
    for i in range(4):
        a(f"v_dot2_f32_bf16 v16, v{28+i}, v{28+i}, v16")
        a(f"v_dot2_f32_bf16 v17, v{28+i}, v{VONE}, v17")
    a("s_nop 3")
    for dpp in ("quad_perm:[1,0,3,2]", "quad_perm:[2,3,0,1]", "row_half_mirror", "row_mirror"):
        a(f"v_add_f32_dpp v16, v16, v16 {dpp} {DPPX}")
        a(f"v_add_f32_dpp v17, v17, v17 {dpp} {DPPX}")
    swap_red("v_add_f32", [16, 17], [18, 19], 16)
    swap_red("v_add_f32", [16, 17], [18, 19], 32)
    ln_stats(16, 17)
    for half in range(2):
        for c4 in range(4):
            cg = half * 4 + c4
            for kc in range(2):
                b = VTA + 8 * c4 + 4 * kc
                off = L_WQ + kc * 32 * 256 + cg * 32
                a(f"ds_read_b64_tr_b16 {vr(b,2)}, v{vTr256} offset:{off}")
                a(f"ds_read_b64_tr_b16 {vr(b+2,2)}, v{vTr256} offset:{off+1024}")
            if c4 % 2 == 1:
                a("s_waitcnt lgkmcnt(0)")
        for c4 in range(4):
            cg = half * 4 + c4
            a(f"v_mfma_f32_16x16x32_bf16 {vr(VO+4*cg,4)}, v[20:23], {vr(VTA+8*c4,4)}, 0")
            a(f"v_mfma_f32_16x16x32_bf16 {vr(VO+4*cg,4)}, v[24:27], {vr(VTA+8*c4+4,4)}, {vr(VO+4*cg,4)}")
        a("s_nop 7")
    for cg in range(8):
        a(f"v_fma_f32 v{VO+4*cg}, -v17, v{VO+4*cg+1}, v{VO+4*cg}")
        a(f"v_mul_f32 v{VO+4*cg}, v16, v{VO+4*cg}")
    a(f"s_mov_b64 exec, s[{sM16}:{sM16+1}]")
    for cg in range(8):
        a(f"ds_write_b32 v{vL4}, v{VO+4*cg} offset:{L_O+cg*64}")
        a(f"ds_write_b32 v{vL4}, v{VO+4*cg+1} offset:{L_O+512+cg*64}")
    a(f"s_mov_b64 exec, -1")
    a(f"v_lshrrev_b32 v16, 5, v{vLane}")
    a(f"v_lshlrev_b32 v16, 17, v16")
    a(f"v_and_b32 v17, 31, v{vLane}")
    a(f"v_lshl_add_u32 v16, v17, 4, v16")
    a(f"s_lshl_b32 s{sT0}, s{sU}, 9")
    a("s_waitcnt lgkmcnt(0)")
    a(f"v_lshlrev_b32 v17, 3, v{vLane}")
    a(f"ds_read_b128 v[12:15], v{vVo} offset:{L_O}")
    a(f"ds_read_b64 v[24:25], v17 offset:{L_O}")
    mktag()
    a(f"v_mov_b32 v29, s{sEp}")
    a(f"v_mov_b32 v31, s{sEp+1}")
    a(f"s_lshl_b32 s{sT5}, s{sU}, 10")
    a(f"s_add_u32 s{sT5}, s{sT5}, {QGB}")
    a(f"s_mov_b32 s{sT6}, s{sT0}")
    a(f"v_mov_b32 v27, v16")
    a("s_waitcnt lgkmcnt(0)")
    a(f"v_mov_b32 v28, v24")
    a(f"v_mov_b32 v30, v25")
    a(f"buffer_store_dwordx4 v[28:31], v{vVo}, {srd(SRD_WS)}, s{sT5} offen")
    for i in range(4):
        setbits(12 + i)
    stamp(19)
    if opt.get("noread"): a("s_branch L_FIN")
    a(f"v_bfe_u32 v16, v{vLane}, 2, 3")
    a(f"v_lshlrev_b32 v16, 5, v16")
    a(f"v_and_or_b32 v16, v{vLane}, 3, v16")
    a(f"v_add_u32 v16, 28, v16")
    a(f"s_lshl_b32 s{sT0}, s{sC}, 5")
    a(f"v_add_u32 v17, s{sT0}, v{vLane}")
    a(f"v_cmp_gt_u32 vcc, 32, v{vLane}")
    a(f"v_cndmask_b32 v26, v16, v17, vcc")
    a(f"v_lshlrev_b32 v26, 7, v26")
    a(f"s_mov_b32 s{sT1}, {FLB}")
    a(f"s_lshl_b32 s{sT0}, s{sH}, 13")
    a(f"s_add_u32 s{sT0}, s{sT0}, {QGB}")
    a(f"s_add_u32 s{sT3}, s{sT0}, 4096")
    a(f"v_mov_b32 v17, 0")
    La = a.newlabel("TRIG")
    a.label(La)
    a("s_sleep 2")
    a(f"ds_read_b32 v18, v17 offset:{L_ACK}")
    a("s_waitcnt lgkmcnt(0)")
    a(f"v_cmp_eq_u32 vcc, 0, v18")
    a(f"s_cbranch_vccnz {La}")
    stamp(4)

    def qg_loads():
        for k in range(8):
            a(f"buffer_load_dwordx4 {vr(VO+4*k,4)}, v{vVo}, {srd(SRD_WS)}, s{sT0 if k < 4 else sT3} offen offset:{1024*(k%4)} sc1")
    qg_loads()
    Lf = a.newlabel("FLAG")
    Lfd = a.newlabel("FLAGD")
    a.label(Lf)
    a(f"buffer_load_dwordx2 v[20:21], v26, {srd(SRD_WS)}, s{sT1} offen sc1")
    a("s_waitcnt vmcnt(0)")
    a(f"v_xor_b32 v20, s{sEp}, v20")
    a(f"v_xor_b32 v21, s{sT2}, v21")
    a(f"v_lshrrev_b32 v17, 8, v21")
    a(f"v_or_b32 v16, v20, v17")
    a(f"v_cmp_ne_u32 vcc, 0, v16")
    a(f"s_cbranch_vccz {Lfd}")
    a(f"s_sleep {opt.get('sleep_f', 8)}")
    a(f"s_add_u32 s{sTO}, s{sTO}, 8")
    a(f"s_cmp_lt_u32 s{sTO}, 40000")
    a(f"s_cbranch_scc1 {Lf}")
    a.label(Lfd)
    a(f"v_cmp_ne_u32 vcc, 0, v21")
    a(f"s_cmp_eq_u32 vcc_lo, 0")
    a(f"s_cselect_b32 s{sFast}, {0 if opt.get('nofast') else 1}, 0")
    a(f"v_mov_b32 v16, s{sFast}")
    a(f"v_mov_b32 v17, {L_FLAG}")
    a(f"ds_write_b32 v17, v16")
    fast_store([f"buffer_store_dwordx4 v[12:15], v27, {srd(SRD_WS)}, s{sT6} offen"])
    Lq = a.newlabel("QG")
    Lq0 = a.newlabel("QG0")
    Lqd = a.newlabel("QGD")
    a(f"s_cmp_lg_u32 s{sFast}, 0")
    a(f"s_cbranch_scc1 {Lq0}")
    a(f"buffer_store_dwordx4 v[28:31], v{vVo}, {srd(SRD_WS)}, s{sT5} offen sc1")
    a(f"s_branch {Lq0}")
    a.label(Lq)
    qg_loads()
    a("s_waitcnt vmcnt(0)")
    a.label(Lq0)
    a(f"v_mov_b32 v16, 0")
    for k in range(8):
        a(f"v_xor_b32 v{VO+4*k+1}, s{sEp}, v{VO+4*k+1}")
        a(f"v_xor_b32 v{VO+4*k+3}, s{sEp+1}, v{VO+4*k+3}")
        a(f"v_or3_b32 v16, v16, v{VO+4*k+1}, v{VO+4*k+3}")
    a(f"v_cmp_ne_u32 vcc, 0, v16")
    a(f"s_cbranch_vccz {Lqd}")
    a(f"s_sleep {opt.get('sleep_f', 8)}")
    a(f"s_add_u32 s{sTO}, s{sTO}, 8")
    a(f"s_cmp_lt_u32 s{sTO}, 40000")
    a(f"s_cbranch_scc1 {Lq}")
    a.label(Lqd)
    stamp(5)
    a(f"v_add_f32 v20, v{VO}, v{VO+4}")
    a(f"v_add_f32 v21, v{VO+2}, v{VO+6}")
    for k in range(2, 8):
        a(f"v_add_f32 v20, v20, v{VO+4*k}")
        a(f"v_add_f32 v21, v21, v{VO+4*k+2}")
    a(f"v_cvt_pk_bf16_f32 v20, v20, v21")
    a(f"ds_write_b32 v{vL4}, v20 offset:{L_Q}")
    a("s_waitcnt lgkmcnt(0)")

    def sum4x4(dst, VO=VO):
        for r in range(4):
            a(f"v_add_f32 v{VO+r}, v{VO+r}, v{VO+4+r}")
            a(f"v_add_f32 v{VO+8+r}, v{VO+8+r}, v{VO+12+r}")
        for r in range(4):
            a(f"v_add_f32 v{dst+r}, v{VO+r}, v{VO+8+r}")
        swap_red("v_add_f32", [dst + r for r in range(4)], [VO + r for r in range(4)], 32)

    a("s_branch L_FIN" if opt.get("loadonly") else "s_branch L_S2")
    a.label("L_QBAR")
    a("s_barrier")
    a.label("L_S2")
    stamp(6, True)
    a(f"v_lshlrev_b32 v12, 4, v{vG}")
    a(f"v_mov_b32 v13, {L_FLAG}")
    for j in range(4):
        a(f"ds_read_b128 {vr(VQB+4*j,4)}, v12 offset:{L_Q+64*j}")
    a(f"ds_read_b32 v13, v13")
    a(f"s_waitcnt vmcnt({16+NAFTER}) lgkmcnt(0)")
    a(f"v_readfirstlane_b32 s{sFast}, v13")
    for T in range(4):
        for j in range(4):
            c = "0" if j == 0 else vr(VSC + 4 * T, 4)
            a(f"v_mfma_f32_16x16x32_bf16 {vr(VSC+4*T,4)}, {vr(VK+16*T+4*j,4)}, {vr(VQB+4*j,4)}, {c}")
    a(f"v_max3_f32 v12, v{VSC}, v{VSC+1}, v{VSC+2}")
    for i in range(3, 15, 2):
        a(f"v_max3_f32 v12, v12, v{VSC+i}, v{VSC+i+1}")
    a(f"v_max_f32 v12, v12, v{VSC+15}")
    swap_red("v_max_f32", [12], [13], 32)
    swap_red("v_max_f32", [12], [13], 16)
    a(f"v_mul_f32 v12, s{sScale}, v12")
    for i in range(16):
        a(f"v_fma_f32 v{VSC+i}, v{VSC+i}, s{sScale}, -v12")
    for i in range(16):
        a(f"v_exp_f32 v{VSC+i}, v{VSC+i}")
    for i in range(8):
        a(f"v_cvt_pk_bf16_f32 v{VP+i}, v{VSC+2*i}, v{VSC+2*i+1}")
    stamp(7, True)
    VT = [VTA, VS0]
    VSRC = [VS0, VS1]
    for b in range(2):
        Ls = a.newlabel("NOTR")
        a(f"s_cmp_lg_u32 s{sLayer}, 0")
        a(f"s_cbranch_scc1 {Ls}")
        for e2 in range(4):
            a(f"s_waitcnt vmcnt({NAFTER + (8 if b == 0 else 0) + 6 - 2*e2})")
            for d in range(4):
                r0 = VSRC[b] + 4 * (2 * e2) + d
                r1 = VSRC[b] + 4 * (2 * e2 + 1) + d
                a(f"v_perm_b32 v{VT[b] + 4*(2*d) + e2}, v{r1}, v{r0}, s{sPermLo}")
                a(f"v_perm_b32 v{VT[b] + 4*(2*d+1) + e2}, v{r1}, v{r0}, s{sPermHi}")
        a.label(Ls)
        for jj in range(8):
            c = "0" if b == 0 else vr(VO + 4 * jj, 4)
            a(f"v_mfma_f32_16x16x32_bf16 {vr(VO+4*jj,4)}, {vr(VP+4*b,4)}, {vr(VT[b]+4*jj,4)}, {c}")
        c = "0" if b == 0 else vr(VLA, 4)
        a(f"v_mfma_f32_16x16x32_bf16 {vr(VLA,4)}, {vr(VP+4*b,4)}, {vr(VONE,4)}, {c}")
    a(f"s_lshl_b32 s{sT0}, s{sW}, 9")
    a(f"s_add_u32 s{sT0}, s{sT0}, {L_O}")
    a(f"v_lshl_add_u32 v13, v{vN}, 5, s{sT0}")
    a(f"s_lshl_b32 s{sT0}, s{sW}, 2")
    a(f"s_add_u32 s{sT0}, s{sT0}, {L_M}")
    a(f"v_mov_b32 v14, s{sT0}")
    a(f"s_mov_b64 exec, s[{sM16}:{sM16+1}]")
    for k in range(4):
        a(f"ds_write2_b32 v13, v{VO+8*k}, v{VO+8*k+4} offset0:{2*k} offset1:{2*k+1}")
    a(f"ds_write2_b32 v14, v12, v{VLA} offset0:0 offset1:{(L_L-L_M)//4}")
    a(f"s_mov_b64 exec, -1")
    Lnw = a.newlabel("NOWL")
    a(f"s_or_b32 s{sT0}, s{sLayer}, s{sW}")
    a(f"s_cmp_lg_u32 s{sT0}, 0")
    a(f"s_cbranch_scc1 {Lnw}")
    a("s_barrier")
    a(f"s_or_b32 s{sT0}, s{sIsS3}, s{sIsFFN}")
    a(f"s_cmp_eq_u32 s{sT0}, 0")
    a(f"s_cbranch_scc1 {Lnw}")
    a(f"s_cmp_eq_u32 s{sIsS3}, 1")
    a(f"s_cselect_b32 s{SRD_W1}, s{SRD_WO}, s{SRD_W1}")
    a(f"s_cselect_b32 s{SRD_W1+1}, s{SRD_WO+1}, s{SRD_W1+1}")
    a(f"s_cselect_b32 s{SRD_W1+2}, s{SRD_WO+2}, s{SRD_W1+2}")
    a(f"s_movk_i32 s{sT4}, 2752")
    a(f"s_cselect_b32 s{sT4}, 1024, s{sT4}")
    a(f"s_cselect_b32 s{sT1}, s{sJ}, s{sF}")
    a(f"s_cselect_b32 s{sT5}, s{sC}, 0")
    a(f"v_lshrrev_b32 v12, 2, v{vLane}")
    a(f"v_and_b32 v13, 3, v{vLane}")
    a(f"v_lshlrev_b32 v13, 4, v13")
    a(f"v_mad_u32_u24 v15, v12, s{sT4}, v13")
    a(f"s_lshl_b32 s{sT5}, s{sT5}, 19")
    a(f"s_lshl_b32 s{sT1}, s{sT1}, 6")
    a(f"s_add_u32 s{sT0}, s{sT1}, s{sT5}")
    a(f"s_lshl_b32 s{sT4}, s{sT4}, 4")
    a(f"s_mov_b32 m0, {L_WA}")
    Lwl = a.newlabel("WL")
    a.label(Lwl)
    a(f"buffer_load_dwordx4 v15, {srd(SRD_W1)}, s{sT0} offen nt lds")
    a(f"s_add_u32 s{sT0}, s{sT0}, s{sT4}")
    a(f"s_add_u32 m0, m0, 1024")
    a(f"s_cmp_lt_u32 m0, {L_WA + 32768}")
    a(f"s_cbranch_scc1 {Lwl}")
    stamp(0)
    a.label(Lnw)
    a(f"v_mov_b32 v12, 0")
    a(f"v_lshlrev_b32 v13, 3, v{vLane}")
    a(f"v_lshrrev_b32 v{VP+6}, 2, v{vLane}")
    a(f"v_lshlrev_b32 v{VP+6}, 8, v{VP+6}")
    a(f"v_and_b32 v{VP+7}, 3, v{vLane}")
    a(f"v_lshl_add_u32 v{VP+6}, v{VP+7}, 2, v{VP+6}")
    a(f"s_lshl_b32 s{sT0}, s{sH}, 12")
    a(f"s_lshl_b32 s{sT1}, s{sS}, 4")
    a(f"s_add_u32 s{sT0}, s{sT0}, s{sT1}")
    a(f"s_add_u32 s{sT0}, s{sT0}, {OPB}")
    a(f"s_lshl_b32 s{sT1}, s{sH}, 6")
    a(f"s_and_b32 s{sT2}, s{sS}, 3")
    a(f"s_lshl_b32 s{sT2}, s{sT2}, 4")
    a(f"s_add_u32 s{sT1}, s{sT1}, s{sT2}")
    a(f"s_lshr_b32 s{sT2}, s{sS}, 2")
    a(f"s_lshl_b32 s{sT2}, s{sT2}, 3")
    a(f"s_add_u32 s{sT1}, s{sT1}, s{sT2}")
    a(f"s_add_u32 s{sT1}, s{sT1}, {MLB}")
    a("s_waitcnt lgkmcnt(0)")
    stamp(14, True)
    a("s_barrier")
    stamp(8, True)
    Lw0 = a.newlabel("W0")
    a(f"s_cmp_eq_u32 s{sW}, 0")
    a(f"s_cbranch_scc1 {Lw0}")
    a(f"s_cmp_lg_u32 s{sW}, 1")
    a("s_cbranch_scc1 L_S2DONE")
    a(f"s_lshl_b32 s{sT0}, s{sU}, 2")
    a(f"s_add_u32 s{sT0}, s{sT0}, {CNB}")
    a(f"v_mov_b32 v13, s{sBits}")
    a(f"s_mov_b64 exec, 1")
    fast_store([f"buffer_store_dword v13, v12, {srd(SRD_WS)}, s{sT0} offen"])
    a(f"s_mov_b64 exec, -1")
    a("s_branch L_S2DONE")
    a.label(Lw0)
    a(f"ds_read_b128 v[16:19], v12 offset:{L_M}")
    a(f"ds_read_b128 v[20:23], v12 offset:{L_M+16}")
    a(f"ds_read_b128 v[24:27], v12 offset:{L_L}")
    a(f"ds_read_b128 v[28:31], v12 offset:{L_L+16}")
    for w in range(8):
        a(f"ds_read_b64 {vr(VO+2*w,2)}, v13 offset:{L_O+512*w}")
    a("s_waitcnt lgkmcnt(10)")
    a(f"v_max3_f32 v14, v16, v17, v18")
    a(f"v_max3_f32 v14, v14, v19, v20")
    a(f"v_max3_f32 v14, v14, v21, v22")
    a(f"v_max_f32 v14, v14, v23")
    for w in range(8):
        a(f"v_sub_f32 v{16+w}, v{16+w}, v14")
    for w in range(8):
        a(f"v_exp_f32 v{16+w}, v{16+w}")
    a("s_waitcnt lgkmcnt(0)")
    a(f"v_mul_f32 v{VP}, v16, v{VO}")
    a(f"v_mul_f32 v{VP+1}, v16, v{VO+1}")
    for w in range(1, 8):
        a(f"v_fmac_f32 v{VP}, v{16+w}, v{VO+2*w}")
        a(f"v_fmac_f32 v{VP+1}, v{16+w}, v{VO+2*w+1}")
    a(f"v_cvt_pk_bf16_f32 v{VP+2}, v{VP}, v{VP+1}")
    setbits(VP + 2)
    a(f"v_lshlrev_b32 v{VP+3}, 16, v{VP+2}")
    a(f"v_and_b32 v{VP+4}, 0xffff0000, v{VP+2}")
    a(f"v_sub_f32 v{VP}, v{VP}, v{VP+3}")
    a(f"v_sub_f32 v{VP+1}, v{VP+1}, v{VP+4}")
    a(f"v_cvt_pk_bf16_f32 v{VP+3}, v{VP}, v{VP+1}")
    setbits(VP + 3)
    a(f"v_mul_f32 v15, v16, v24")
    for w in range(1, 8):
        a(f"v_fmac_f32 v15, v{16+w}, v{24+w}")
    setbits(14)
    setbits(15)
    fast_store([
        f"buffer_store_dword v{VP+2}, v{VP+6}, {srd(SRD_WS)}, s{sT0} offen",
        f"buffer_store_dword v{VP+3}, v{VP+6}, {srd(SRD_WS)}, s{sT0} offen offset:128",
        f"s_mov_b64 exec, 1",
        f"buffer_store_dwordx2 v[14:15], v12, {srd(SRD_WS)}, s{sT1} offen",
        f"s_mov_b64 exec, -1",
    ])
    stamp(9, True)
    a.label("L_S2DONE")
    Lw = a.newlabel("NOW")
    a(f"s_cmp_lg_u32 s{sLayer}, 0")
    a(f"s_cbranch_scc1 {Lw}")
    a(f"s_lshl_b32 s{sT0}, s{sW}, 5")
    a(f"v_add_u32 v12, s{sT0}, v{vTr256}")
    for kc in range(2):
        off = L_WQ + kc * 32 * 256
        a(f"ds_read_b64_tr_b16 {vr(VWQ+4*kc,2)}, v12 offset:{off}")
        a(f"ds_read_b64_tr_b16 {vr(VWQ+4*kc+2,2)}, v12 offset:{off+1024}")
    a(f"s_or_b32 s{sT0}, s{sIsS3}, s{sIsFFN}")
    a(f"s_cmp_eq_u32 s{sT0}, 0")
    a(f"s_cbranch_scc1 L_HOPE")
    Lnf = a.newlabel("NOF")
    a(f"s_cmp_eq_u32 s{sIsFFN}, 0")
    a(f"s_cbranch_scc1 {Lnf}")
    a(f"v_lshrrev_b32 v12, 3, v{vLane}")
    a(f"v_and_b32 v13, 7, v{vLane}")
    a(f"v_lshlrev_b32 v13, 4, v13")
    a(f"v_lshl_add_u32 v16, v12, 10, v13")
    a(f"s_lshl_b32 s{sT0}, s{sF}, 15")
    a(f"s_lshl_b32 s{sT1}, s{sW}, 7")
    a(f"s_add_u32 s{sT0}, s{sT0}, s{sT1}")
    a(f"s_lshl_b32 s{sT2}, s{sW}, 12")
    a(f"s_add_u32 s{sT3}, s{sT2}, {L_W2}")
    for i in range(4):
        a(f"s_mov_b32 m0, s{sT3}")
        a(f"buffer_load_dwordx4 v16, {srd(SRD_W2)}, s{sT0} offen nt lds")
        a(f"s_add_u32 s{sT0}, s{sT0}, {8*1024}")
        a(f"s_add_u32 s{sT3}, s{sT3}, 1024")
    a.label(Lnf)
    a("s_waitcnt vmcnt(0)")
    a("s_barrier")
    stamp(1, True)
    for cg in range(2):
        for kc in range(2):
            off = L_WA + kc * 32 * 64 + cg * 32
            a(f"ds_read_b64_tr_b16 {vr(VWA+8*cg+4*kc,2)}, v{vTr64} offset:{off}")
            a(f"ds_read_b64_tr_b16 {vr(VWA+8*cg+4*kc+2,2)}, v{vTr64} offset:{off+256}")
    a.label(Lw)

    a(f"s_cmp_eq_u32 s{sIsS3}, 0")
    a("s_cbranch_scc1 L_S4")
    a(f"s_lshl_b32 s{sT1}, s{sC}, 14")
    a(f"s_lshl_b32 s{sT2}, s{sW}, 11")
    a(f"s_add_u32 s{sT1}, s{sT1}, s{sT2}")
    a(f"s_add_u32 s{sT1}, s{sT1}, {OPB}")
    a(f"s_lshr_b32 s{sT0}, s{sW}, 1")
    a(f"s_lshl_b32 s{sT2}, s{sC}, 2")
    a(f"s_add_u32 s{sT0}, s{sT0}, s{sT2}")
    a(f"s_lshl_b32 s{sT0}, s{sT0}, 6")
    a(f"s_add_u32 s{sT0}, s{sT0}, {MLB}")
    a(f"v_and_b32 v13, 3, v{vLane}")
    a(f"v_lshlrev_b32 v13, 4, v13")
    a(f"s_or_b64 s[{sPC}:{sPC+1}], s[{sMg1}:{sMg1+1}], s[{sMg3}:{sMg3+1}]")
    a(f"s_lshl_b32 s{sT2}, s{sW}, 4")
    a(f"v_lshl_add_u32 v{VP}, v{vN}, 7, s{sT2}")
    a(f"v_lshl_add_u32 v{VP}, v{vG}, 2, v{VP}")
    a(f"v_and_b32 v{VP+1}, 31, v{vLane}")
    a(f"v_lshrrev_b32 v{VP+2}, 5, v{vLane}")
    a(f"v_lshlrev_b32 v{VP+1}, 7, v{VP+1}")
    a(f"v_lshl_add_u32 v{VP+1}, v{VP+2}, 6, v{VP+1}")
    a(f"s_lshl_b32 s{sT2}, s{sC}, 11")
    a(f"s_lshl_b32 s{sT3}, s{sJ}, 7")
    a(f"s_add_u32 s{sT2}, s{sT2}, s{sT3}")
    a(f"s_add_u32 s{sT2}, s{sT2}, {YPB}")
    a(f"s_lshr_b32 s{sT3}, s{sW}, 1")
    a(f"s_lshl_b32 s{sT3}, s{sT3}, 5")
    a(f"s_lshl_b32 s{sT4}, s{sC}, 7")
    a(f"s_add_u32 s{sT3}, s{sT3}, s{sT4}")
    a(f"s_add_u32 s{sT3}, s{sT3}, {CNB}")
    a(f"v_and_b32 v28, 28, v{vL4}")
    a("s_waitcnt lgkmcnt(0)")
    if opt.get("canb", True):
        Lsk = a.newlabel("SKC")
        a(f"s_cmp_eq_u32 s{sW}, 0")
        a(f"s_cbranch_scc1 {Lsk}")
        poll([f"buffer_load_dword v16, v28, {srd(SRD_WS)}, s{sT3} offen sc1"], [16], 15)
        a.label(Lsk)
    stamp(2, True)
    poll([
        f"buffer_load_dwordx4 v[20:23], v{vVo}, {srd(SRD_WS)}, s{sT1} offen sc1",
        f"buffer_load_dwordx4 v[24:27], v{vVo}, {srd(SRD_WS)}, s{sT1} offen offset:1024 sc1",
        f"buffer_load_dwordx4 v[16:19], v13, {srd(SRD_WS)}, s{sT0} offen sc1",
    ], list(range(16, 28)), 15)
    stamp(10, True)
    for cg in range(2):
        a(f"v_mfma_f32_16x16x32_bf16 {vr(VO+4*cg,4)}, v[20:23], {vr(VWA+8*cg,4)}, 0")
        a(f"v_mfma_f32_16x16x32_bf16 {vr(VO+4*cg,4)}, v[24:27], {vr(VWA+8*cg+4,4)}, {vr(VO+4*cg,4)}")
    a(f"v_max_f32 v28, v16, v18")
    a(f"v_max_f32_dpp v28, v28, v28 quad_perm:[1,0,3,2] {DPPX}")
    a(f"v_max_f32_dpp v28, v28, v28 quad_perm:[2,3,0,1] {DPPX}")
    a(f"v_sub_f32 v16, v16, v28")
    a(f"v_sub_f32 v18, v18, v28")
    a(f"v_exp_f32 v16, v16")
    a(f"v_exp_f32 v18, v18")
    a(f"v_mul_f32 v29, v16, v17")
    a(f"v_fmac_f32 v29, v18, v19")
    a(f"v_add_f32_dpp v29, v29, v29 quad_perm:[1,0,3,2] {DPPX}")
    a(f"v_add_f32_dpp v29, v29, v29 quad_perm:[2,3,0,1] {DPPX}")
    a(f"v_cndmask_b32_e64 v16, v16, v18, s[{sPC}:{sPC+1}]")
    a(f"v_rcp_f32 v29, v29")
    a(f"v_mul_f32 v16, v16, v29")
    for r in range(4):
        a(f"v_mov_b32_dpp v{20+r}, v16 quad_perm:[{r},{r},{r},{r}] {DPPX}")
    for cg in range(2):
        a(f"v_mul_f32 v{30+cg}, v20, v{VO+4*cg}")
    for r in range(1, 4):
        for cg in range(2):
            a(f"v_fmac_f32 v{30+cg}, v{20+r}, v{VO+4*cg+r}")
    a(f"ds_write_b32 v{VP}, v30 offset:{L_S3}")
    a(f"ds_write_b32 v{VP}, v31 offset:{L_S3+2048}")
    a("s_waitcnt lgkmcnt(0)")
    a("s_barrier")
    a(f"s_cmp_lg_u32 s{sW}, 0")
    a("s_cbranch_scc1 L_HOPE")
    for k in range(4):
        a(f"ds_read_b128 {vr(16+4*k,4)}, v{VP+1} offset:{L_S3+16*k}")
    a("s_waitcnt lgkmcnt(0)")
    for k in range(8):
        a(f"v_add_f32 v{16+k}, v{16+k}, v{24+k}")
    for k in range(4):
        a(f"v_add_f32 v{16+k}, v{16+k}, v{20+k}")
    a(f"v_add_f32 v16, v16, v18")
    a(f"v_add_f32 v17, v17, v19")
    a(f"v_add_f32 v16, v16, v17")
    swap_red("v_add_f32", [16], [17], 32)
    setbits(16)
    a(f"s_mov_b32 exec_hi, 0")
    a(f"buffer_store_dword v16, v{vL4}, {srd(SRD_WS)}, s{sT2} offen sc1")
    a(f"s_mov_b64 exec, -1")
    stamp(11, True)
    a("s_branch L_HOPE")

    a.label("L_S4")
    a(f"s_cmp_eq_u32 s{sIsFFN}, 0")
    a("s_cbranch_scc1 L_HOPE")
    Lw = a.newlabel("NOW")
    a(f"s_cmp_lg_u32 s{sLayer}, 0")
    a(f"s_cbranch_scc1 {Lw}")
    a(f"v_and_b32 v12, 7, v{vN}")
    a(f"v_lshl_add_u32 v12, v{vG}, 3, v12")
    a(f"v_lshlrev_b32 v12, 1, v12")
    a(f"s_lshl_b32 s{sT0}, s{sF}, 6")
    a(f"buffer_load_ushort v{vB1}, v12, {srd(SRD_B1)}, s{sT0} offen")
    a(f"v_lshlrev_b32 v13, 1, v{vLane}")
    a(f"s_lshl_b32 s{sT0}, s{sW}, 7")
    a(f"buffer_load_ushort v{vXres}, v13, {srd(SRD_X)}, s{sT0} offen")
    a(f"v_add_u32 v12, {L_W2}, v{vTr128}")
    a("s_waitcnt lgkmcnt(0)")
    for cg in range(4):
        a(f"ds_read_b64_tr_b16 {vr(VWB+4*cg,2)}, v12 offset:{cg*32}")
        a(f"ds_read_b64_tr_b16 {vr(VWB+4*cg+2,2)}, v12 offset:{cg*32+512}")
    a("s_waitcnt vmcnt(0) lgkmcnt(0)")
    a(f"v_lshlrev_b32 v{vB1}, 16, v{vB1}")
    a(f"v_lshlrev_b32 v{vXres}, 16, v{vXres}")
    Lx = a.newlabel("XOK")
    a(f"s_branch {Lx}")
    a.label(Lw)
    a(f"s_lshl_b32 s{sT0}, s{sW}, 8")
    a(f"s_add_u32 s{sT0}, s{sT0}, {YPB+8*2048}")
    poll([f"buffer_load_dword v{vXres}, v{vL4}, {srd(SRD_WS)}, s{sT0} offen sc1"], [vXres], 15)
    a.label(Lx)
    a(f"s_lshl_b32 s{sT4}, s{sW}, 8")
    a(f"s_add_u32 s{sT0}, s{sT4}, {YPB}")
    a(f"s_add_u32 s{sT1}, s{sT0}, 4096")
    a(f"s_add_u32 s{sT2}, s{sT0}, 8192")
    a(f"s_add_u32 s{sT3}, s{sT0}, 12288")
    a(f"s_add_u32 s{sT4}, s{sT4}, {FP0}")
    a(f"s_add_u32 s{sT5}, s{sT4}, {NF*2048}")
    a(f"s_lshl_b32 s{sT6}, s{sF}, 11")
    a(f"s_add_u32 s{sT4}, s{sT4}, s{sT6}")
    a(f"s_lshl_b32 s{sT6}, s{sW}, 2")
    a(f"s_add_u32 s{sT6}, s{sT6}, {L_H}")
    a(f"v_lshl_add_u32 v{VP}, v{vN}, 10, s{sT6}")
    a(f"v_lshl_add_u32 v{VP}, v{vG}, 7, v{VP}")
    a(f"s_lshl_b32 s{sT6}, s{sW}, 3")
    a(f"v_mov_b32 v{VP+1}, s{sT6}")
    a(f"v_and_b32 v12, 7, v{vN}")
    a(f"v_lshl_add_u32 v14, v{vG}, 3, v12")
    a(f"v_lshrrev_b32 v13, 3, v{vN}")
    a(f"v_lshlrev_b32 v13, 4, v13")
    a(f"v_lshl_add_u32 v{VP+2}, v14, 5, v13")
    a(f"v_lshlrev_b32 v{VP+3}, 3, v12")
    a(f"s_lshl_b32 s{sT6}, s{sW}, 7")
    a(f"s_add_u32 s{sT6}, s{sT6}, {L_XT}")
    a(f"v_lshl_add_u32 v{VP+4}, v14, 1, s{sT6}")
    a(f"v_lshl_add_u32 v{VP+5}, v{vG}, 4, s{sT6}")
    lds_ = []
    for c in range(8):
        lds_.append(f"buffer_load_dword v{16+c}, v{vL4}, {srd(SRD_WS)}, s{[sT0,sT1,sT2,sT3][c//2]} offen offset:{(c%2)*2048} sc1")
    poll(lds_, list(range(16, 24)), 15, sleep=opt.get("sleep_c", 0))
    stamp(10, True)
    for k in range(4):
        a(f"v_add_f32 v{16+k}, v{16+k}, v{20+k}")
    a(f"v_add_f32 v16, v16, v18")
    a(f"v_add_f32 v17, v17, v19")
    a(f"v_add_f32 v16, v16, v17")
    bf16round(16)
    a(f"v_add_f32 v16, v16, v{vXres}")
    a(f"v_cvt_pk_bf16_f32 v16, v16, v16")
    a(f"ds_write_b16 v{vXT}, v16")
    a(f"v_lshl_or_b32 v16, v16, 16, s{sBits}")
    Lp = a.newlabel("NOX1")
    a(f"s_cmp_lg_u32 s{sF}, 0")
    a(f"s_cbranch_scc1 {Lp}")
    a(f"buffer_store_dword v16, v{vL4}, {srd(SRD_WS)}, s{sT5} offen sc1")
    a.label(Lp)
    a("s_waitcnt lgkmcnt(0)")
    a(f"ds_read_b128 v[20:23], v{vXA}")
    a(f"ds_read_b128 v[24:27], v{vXA} offset:64")
    a("s_waitcnt lgkmcnt(1)")
    for cg in range(2):
        a(f"v_mfma_f32_16x16x32_bf16 {vr(VO+4*cg,4)}, {vr(VWA+8*cg,4)}, v[20:23], 0")
    a(f"v_mfma_f32_16x16x32_bf16 v[28:31], v[20:23], v[20:23], 0")
    a("s_waitcnt lgkmcnt(0)")
    for cg in range(2):
        a(f"v_mfma_f32_16x16x32_bf16 {vr(VO+4*cg,4)}, {vr(VWA+8*cg+4,4)}, v[24:27], {vr(VO+4*cg,4)}")
    a(f"v_mfma_f32_16x16x32_bf16 v[28:31], v[24:27], v[24:27], v[28:31]")
    a(f"s_mov_b64 exec, s[{sMn0}:{sMn0+1}]")
    for cg in range(2):
        a(f"ds_write2_b32 v{VP}, v{VO+4*cg}, v{VO+4*cg+1} offset0:{cg*128} offset1:{cg*128+8}")
        a(f"ds_write2_b32 v{VP}, v{VO+4*cg+2}, v{VO+4*cg+3} offset0:{cg*128+16} offset1:{cg*128+24}")
    a(f"s_mov_b64 exec, 1")
    a(f"ds_write_b64 v{VP+1}, v[28:29] offset:{L_ST}")
    a(f"s_mov_b64 exec, -1")
    a("s_waitcnt lgkmcnt(0)")
    a("s_barrier")
    a(f"ds_read_b64 v[16:17], v{VP+3} offset:{L_ST}")
    a(f"ds_read_b128 v[20:23], v{VP+2} offset:{L_H}")
    a(f"ds_read_b128 v[24:27], v{VP+2} offset:{L_H+1024}")
    a("s_waitcnt lgkmcnt(2)")
    for dpp in ("quad_perm:[1,0,3,2]", "quad_perm:[2,3,0,1]", "row_half_mirror"):
        a(f"v_add_f32_dpp v16, v16, v16 {dpp} {DPPX}")
        a(f"v_add_f32_dpp v17, v17, v17 {dpp} {DPPX}")
    ln_stats(16, 17)
    a("s_waitcnt lgkmcnt(0)")
    a(f"v_add_f32 v20, v20, v21")
    a(f"v_add_f32 v22, v22, v23")
    a(f"v_add_f32 v24, v24, v25")
    a(f"v_add_f32 v26, v26, v27")
    a(f"v_add_f32 v20, v20, v22")
    a(f"v_add_f32 v24, v24, v26")
    a(f"v_fma_f32 v20, -v17, v24, v20")
    a(f"v_add_f32_dpp v20, v20, v20 row_ror:8 {DPPX}")
    a(f"v_mul_f32 v20, v16, v20")
    bf16round(20)
    a(f"v_add_f32 v20, v20, v{vB1}")
    bf16round(20)
    k0 = 0.7978845608028654
    k1 = 0.044715
    l2e = 1.4426950408889634
    a(f"v_mul_f32 v21, v20, v20")
    a(f"v_mov_b32 v22, {f32(-2*l2e*k0)}")
    a(f"v_fmac_f32 v22, {f32(-2*l2e*k0*k1)}, v21")
    a(f"v_mul_f32 v22, v22, v20")
    a(f"v_exp_f32 v22, v22")
    a(f"v_add_f32 v22, 1.0, v22")
    a(f"v_rcp_f32 v22, v22")
    a(f"v_mul_f32 v20, v20, v22")
    a(f"v_cvt_pk_bf16_f32 v20, v20, v20")
    a(f"ds_write_b16 v{VP+4}, v20")
    a("s_waitcnt lgkmcnt(0)")
    a(f"ds_read_b128 v[20:23], v{VP+5}")
    a("s_waitcnt lgkmcnt(0)")
    for cg in range(4):
        a(f"v_mfma_f32_16x16x32_bf16 {vr(VO+4*cg,4)}, v[20:23], {vr(VWB+4*cg,4)}, 0")
    a(f"v_cndmask_b32_e64 v16, v{VO}, v{VO+4}, s[{sMg1}:{sMg1+1}]")
    a(f"v_cndmask_b32_e64 v16, v16, v{VO+8}, s[{sMg2}:{sMg2+1}]")
    a(f"v_cndmask_b32_e64 v16, v16, v{VO+12}, s[{sMg3}:{sMg3+1}]")
    setbits(16)
    a(f"buffer_store_dword v16, v{vL4}, {srd(SRD_WS)}, s{sT4} offen sc1")
    stamp(11, True)

    a.label("L_HOPE")
    Lgo = a.newlabel("GOE")
    a(f"s_cmp_eq_u32 s{sLayer}, 0")
    a(f"s_cbranch_scc1 {Lgo}")
    a(f"s_cmp_ge_u32 s{sU}, 8")
    a("s_cbranch_scc1 L_FIN")
    a.label(Lgo)
    a(f"v_lshlrev_b32 v13, 1, v{vLane}")
    a(f"s_lshl_b32 s{sT0}, s{sS}, 7")
    a(f"buffer_load_ushort v{vB2}, v13, {srd(SRD_B2)}, s{sT0} offen")
    a(f"s_lshl_b32 s{sT0}, s{sW}, 11")
    a(f"s_lshl_b32 s{sT1}, s{sS}, 8")
    a(f"s_add_u32 s{sT1}, s{sT1}, {FP0}")
    a(f"s_add_u32 s{sT0}, s{sT0}, s{sT1}")
    a(f"s_add_u32 s{sT1}, s{sT1}, {NF*2048}")
    a(f"s_add_u32 s{sT2}, s{sT0}, {40*2048}")
    a(f"s_cmp_lt_u32 s{sW}, 3")
    a(f"s_cselect_b32 s{sT2}, s{sT2}, s{sT0}")
    a(f"s_cselect_b32 s{sT3}, {f32(1.0)}, 0")
    for i in range(1, 5):
        a(f"v_add_u32 v{23+i}, {i*8*2048}, v{vL4}")
    a(f"s_lshl_b32 s{sT4}, s{sW}, 2")
    a(f"v_lshl_add_u32 v{VP}, v{vLane}, 5, s{sT4}")
    a(f"v_lshlrev_b32 v{VP+1}, 5, v{vLane}")
    Lc = a.newlabel("CAN")
    a(f"s_cmp_lg_u32 s{sW}, 0")
    a(f"s_cbranch_scc1 {Lc}")
    a(f"s_lshl_b32 s{sT4}, s{sH}, 12")
    a(f"s_add_u32 s{sT4}, s{sT4}, {CSB}")
    poll([f"buffer_load_dword v22, v{vL4}, {srd(SRD_WS)}, s{sT1} offen sc1"], [22], 15, sleep=opt.get("sleep_e", 1))
    a(f"s_cmp_lg_u32 s{sLayer}, 0")
    a(f"s_cbranch_scc1 {Lc}")
    for k in range(4):
        a(f"buffer_load_dwordx4 {vr(VSC+4*k,4)}, v{vVo}, {srd(SRD_WS)}, s{sT4} offen offset:{1024*k} sc1")
    a.label(Lc)
    if opt.get("canary", True):
        a("s_barrier")
    lds_ = []
    for i in range(5):
        lds_.append(f"buffer_load_dword v{16+i}, v{vL4 if i == 0 else 23+i}, {srd(SRD_WS)}, s{sT0} offen sc1")
    lds_ += [f"buffer_load_dword v21, v{vL4}, {srd(SRD_WS)}, s{sT2} offen sc1",
             f"buffer_load_dword v22, v{vL4}, {srd(SRD_WS)}, s{sT1} offen sc1"]
    poll(lds_, list(range(16, 23)), 15)
    stamp(12, True)
    a(f"v_add_f32 v16, v16, v17")
    a(f"v_add_f32 v18, v18, v19")
    a(f"v_fmac_f32 v20, s{sT3}, v21")
    a(f"v_add_f32 v16, v16, v18")
    a(f"v_add_f32 v16, v16, v20")
    a(f"ds_write_b32 v{VP}, v16 offset:{L_E}")
    a(f"v_lshlrev_b32 v13, 16, v{vB2}")
    a(f"s_lshl_b32 s{sT0}, s{sW}, 6")
    a(f"s_lshl_b32 s{sT1}, s{sU}, 9")
    a(f"s_add_u32 s{sT0}, s{sT0}, s{sT1}")
    a("s_waitcnt lgkmcnt(0)")
    a("s_barrier")
    a(f"ds_read_b128 v[24:27], v{VP+1} offset:{L_E}")
    a(f"ds_read_b128 v[28:31], v{VP+1} offset:{L_E+16}")
    a("s_waitcnt lgkmcnt(0)")
    for k in range(4):
        a(f"v_add_f32 v{24+k}, v{24+k}, v{28+k}")
    a(f"v_add_f32 v24, v24, v26")
    a(f"v_add_f32 v25, v25, v27")
    a(f"v_add_f32 v16, v24, v25")
    bf16round(16)
    a(f"v_add_f32 v16, v16, v13")
    bf16round(16)
    a(f"v_and_b32 v22, -4, v22")
    a(f"v_add_f32 v16, v16, v22")
    a(f"v_cvt_pk_bf16_f32 v16, v16, v16")
    a(f"s_cmp_lg_u32 s{sLayer}, 0")
    a("s_cbranch_scc1 L_OUT")
    a(f"ds_write_b16 v{vXT}, v16")
    a("s_waitcnt lgkmcnt(0)")
    a(f"ds_read_b128 v[20:23], v{vXA}")
    a(f"ds_read_b128 v[24:27], v{vXA} offset:64")
    a("s_waitcnt lgkmcnt(1)")
    a(f"v_mfma_f32_16x16x32_bf16 {vr(VO,4)}, v[20:23], {vr(VWQ,4)}, 0")
    a(f"v_mfma_f32_16x16x32_bf16 v[28:31], v[20:23], v[20:23], 0")
    a("s_waitcnt lgkmcnt(0)")
    a(f"v_mfma_f32_16x16x32_bf16 {vr(VO,4)}, v[24:27], {vr(VWQ+4,4)}, {vr(VO,4)}")
    a(f"v_mfma_f32_16x16x32_bf16 v[28:31], v[24:27], v[24:27], v[28:31]")
    a(f"v_and_b32 v{VO}, -4, v{VO}")
    a(f"s_mov_b64 exec, s[{sM16}:{sM16+1}]")
    fast_store([f"buffer_store_dword v{VO}, v{vL4}, {srd(SRD_WS)}, s{sT0} offen"])
    a(f"s_mov_b64 exec, -1")
    stamp(13, True)
    a(f"s_mov_b32 s{sLayer}, 1")
    a(f"s_mov_b32 s{sMask}, 2")
    a(f"s_mov_b32 s{sBits}, 0")
    a(f"s_cmp_eq_u32 s{sW}, 0")
    a(f"s_cbranch_scc1 L_HOPA")
    a(f"s_cmp_lg_u32 s{sW}, 1")
    a(f"s_cbranch_scc1 L_QBAR")
    a(f"s_lshl_b32 s{sT0}, s{sU}, 3")
    a(f"s_add_u32 s{sT0}, s{sT0}, {STB}")
    setbits(28)
    setbits(29)
    a(f"s_mov_b64 exec, 1")
    fast_store([f"buffer_store_dwordx2 v[28:29], v{vL4}, {srd(SRD_WS)}, s{sT0} offen"])
    a(f"s_mov_b64 exec, -1")
    a(f"s_cmp_ge_u32 s{sU}, 8")
    a(f"s_cbranch_scc1 L_QBAR")
    a(f"v_lshlrev_b32 v16, 16, v16")
    a(f"s_lshl_b32 s{sT0}, s{sS}, 8")
    a(f"s_add_u32 s{sT0}, s{sT0}, {YPB + 8*2048}")
    a(f"buffer_store_dword v16, v{vL4}, {srd(SRD_WS)}, s{sT0} offen sc1")
    a("s_branch L_QBAR")
    a.label("L_HOPA")
    sum4x4(VCS, VSC)
    a(f"v_and_b32 v14, 7, v{vLane}")
    a(f"v_lshlrev_b32 v14, 3, v14")
    a(f"s_lshl_b32 s{sT0}, s{sH}, 12")
    a(f"s_lshl_b32 s{sT1}, s{sH}, 6")
    a(f"s_add_u32 s{sT1}, s{sT1}, {STB}")
    a(f"v_and_b32 v12, 31, v{vLane}")
    a(f"v_lshlrev_b32 v12, 3, v12")
    poll([f"buffer_load_dwordx2 v[16:17], v14, {srd(SRD_WS)}, s{sT1} offen sc1"] +
         [f"buffer_load_dwordx4 {vr(VO+4*k,4)}, v{vVo}, {srd(SRD_WS)}, s{sT0} offen offset:{1024*k} sc1" for k in range(4)],
         [16, 17] + list(range(VO, VO + 16)), 13)
    stamp(5, True)
    for dpp in ("quad_perm:[1,0,3,2]", "quad_perm:[2,3,0,1]", "row_half_mirror"):
        a(f"v_add_f32_dpp v16, v16, v16 {dpp} {DPPX}")
        a(f"v_add_f32_dpp v17, v17, v17 {dpp} {DPPX}")
    ln_stats(16, 17)
    sum4x4(20)
    for r in range(4):
        a(f"v_fma_f32 v{20+r}, -v17, v{VCS+r}, v{20+r}")
    for r in range(4):
        a(f"v_mul_f32 v{20+r}, v16, v{20+r}")
    a(f"v_cvt_pk_bf16_f32 v20, v20, v21")
    a(f"v_cvt_pk_bf16_f32 v21, v22, v23")
    a(f"ds_write_b64 v12, v[20:21] offset:{L_Q}")
    a("s_waitcnt lgkmcnt(0)")
    a("s_branch L_QBAR")

    a.label("L_OUT")
    a(f"s_cmp_lg_u32 s{sW}, 0")
    a("s_cbranch_scc1 L_FIN")
    a(f"v_lshlrev_b32 v12, 1, v{vLane}")
    a(f"s_lshl_b32 s{sT0}, s{sS}, 7")
    a(f"buffer_store_short v16, v12, {srd(SRD_OUT)}, s{sT0} offen")
    Lne = a.newlabel("NOEP")
    a(f"s_cmp_lg_u32 s{sU}, 0")
    a(f"s_cbranch_scc1 {Lne}")
    a(f"v_mov_b32 v12, {EPB}")
    a(f"v_mov_b32 v13, s{sEp}")
    a(f"s_mov_b64 exec, 1")
    a(f"buffer_store_dword v13, v12, {srd(SRD_WS)}, 0 offen sc1")
    a(f"s_mov_b64 exec, -1")
    if opt.get("amp") is not None:
        kk = opt["amp"]
        stamp(31)
        a(f"v_readlane_b32 s{sT0}, v{vStamp}, {kk}")
        a(f"v_readlane_b32 s{sT1}, v{vStamp}, 15")
        a(f"v_readlane_b32 s{sT2}, v{vStamp}, 31")
        a(f"s_sub_u32 s{sT0}, s{sT0}, s{sT1}")
        a(f"s_min_u32 s{sT0}, s{sT0}, 20000")
        a(f"s_lshl_b32 s{sT0}, s{sT0}, 2")
        Lsp = a.newlabel("SPIN")
        a.label(Lsp)
        a(f"s_memrealtime s[{sStampT}:{sStampT+1}]")
        a("s_waitcnt lgkmcnt(0)")
        a(f"s_sub_u32 s{sT3}, s{sStampT}, s{sT2}")
        a(f"s_cmp_lt_u32 s{sT3}, s{sT0}")
        a(f"s_cbranch_scc1 {Lsp}")
    a.label(Lne)
    stamp(13, True)
    a.label("L_FIN")
    if stamps:
        stamp(31)
        a(f"s_lshl_b32 s{sT0}, s2, 10")
        a(f"s_lshl_b32 s{sT1}, s{sW}, 7")
        a(f"s_add_u32 s{sT0}, s{sT0}, s{sT1}")
        a(f"s_add_u32 s{sT0}, s{sT0}, {STAMP}")
        a(f"s_mov_b32 exec_hi, 0")
        a(f"buffer_store_dword v{vStamp}, v{vL4}, {srd(SRD_WS)}, s{sT0} offen")
    a.label("L_END")
    a("s_endpgm")
    a.raw('.section .rodata,"a"')
    a.raw(".p2align 6")
    a.raw(f".amdhsa_kernel {NAME}_kernel")
    a.raw("  .amdhsa_next_free_vgpr 256")
    a.raw("  .amdhsa_next_free_sgpr 102")
    a.raw("  .amdhsa_accum_offset 256")
    a.raw("  .amdhsa_group_segment_fixed_size 0")
    a.raw("  .amdhsa_kernarg_size 104")
    a.raw("  .amdhsa_user_sgpr_count 2")
    a.raw("  .amdhsa_user_sgpr_kernarg_segment_ptr 1")
    a.raw("  .amdhsa_system_sgpr_workgroup_id_x 1")
    a.raw(".end_amdhsa_kernel")
    return a.text()


if __name__ == "__main__":
    open("k7.s", "w").write(gen(False))
    open("k7s.s", "w").write(gen(True))
    ex = {
      "z_c0": dict(cap=0), "z_c6": dict(cap=6), "z_c0w3": dict(cap=0, trigw=3),
      "z_c0_lo2": dict(cap=0, loadonly=2), "z_c4_lo2": dict(cap=4, loadonly=2), "z_c6_lo2": dict(cap=6, loadonly=2),
      "z_c0_lo1": dict(cap=0, loadonly=1), "z_nofast": dict(nofast=True),
    }
    for k, v in ex.items():
        open(k + ".s", "w").write(gen(True, None, v))
    for kk in (31, 11, 9, 16, 5):
        open(f"amp{kk}.s", "w").write(gen(True, None, dict(amp=kk)))
```

```python
import sys, struct
from emit import Asm

NAME = "interleave_layers__mha_block_cached__dense_activation_gelu__decode"
HEADER = open("cdna_kernels/" + NAME + ".s.ref").read().split("; Override launch")[0]


def f32(x):
    return "0x%08x" % struct.unpack("<I", struct.pack("<f", x))[0]


QPB = 0x00000
CSB = 0x20000
G = 0x40000
OPB = G
STB = G + 0x20000
MLB = G + 0x20800
CNB = G + 0x21000
XRB = G + 0x21400
YBB = G + 0x21C00
YA0 = G + 0x25C00
YAR = 0x4000
CCB = G + 0x3E000
RCMAX = 6
assert YA0 + RCMAX * YAR <= G + 0x40000
FLB = 0x80000
EPB = 0x89000
FPA = 0x90000
FPC = 44 * 256
FPR = 8 * FPC
LDELTA = 0x100000
QGB = 0x100000
NF = 43
STAMP = 0x8000000
OOB = 0x10000000

L_Q = 0x0000
L_FLAG = 0x0100
L_ACK = 0x0110
L_ZERO = 0x0120
L_O = 0x0400
L_S3 = 0x1400
L_XT = 0x4800
L_H = 0x2800
L_E = 0x3000
L_P = 0x3800
L_M = 0x4000
L_X1 = 0x19000
L_WQ = 0x5000
L_WA = 0x9000
L_W2 = 0x11000
LDS_BYTES = 0x19800

SRD_K, SRD_V, SRD_WQ, SRD_WO, SRD_W1, SRD_W2, SRD_WS, SRD_X, SRD_B1, SRD_B2, SRD_OUT, SRD_F = [32 + 4 * i for i in range(12)]
SRD_S = SRD_K
sC, sJ, sU, sH, sS, sW, sF, sIsS3, sIsFFN, sFast, sTO, sKV, sLayer = range(80, 93)
sT0, sT1, sT2, sT3 = 93, 94, 95, 96
sMask = 97
sBits = 98
sT8 = 99
sT4 = 100
sT9 = 101
sPermLo, sPermHi = 14, 15
sScale = 30
sRole = 31
sM16 = 4
sMg1 = 6
sMg2 = 8
sMg3 = 10
sPC = 12
sModd = 16
sMhi8 = 20
sStampT = 18
sT5, sT6, sT7 = 22, 23, 24
sFirst = 26
sEp = 28
sInf = 25
sLD = 3
sS3m, sS3c, sYPst, sQPg = range(40, 44)
sOPst, sMLst, sCNst, sS3d = 12, 13, 24, 29
sWA0, sWAs = 36, 37


def srd(n):
    return f"s[{n}:{n+3}]"


vLane, vN, vG, vKo, vVo = 1, 2, 3, 4, 5
vIdx = 4
vTr64 = 6
vTr128 = 7
vTr256 = 8
vXA = 9
vL4 = 10
vStamp = 11
VK = 32
VT = 96
VS1 = 160
VWA, VWB = 160, 176
VO = 192
VPQ = 192
VQQ = 208
VD = 224
VWQ = 240
VCS = 248
vB1, vB2, vXres, vXT = 252, 253, 254, 255
vQA = 12
vL8, vMr, vWs, vOPs, vOw = 27, 28, 29, 30, 31
vS1a, vQw, vSTa = 6, 7, 8
vS3m, vS3c, vS3w, vS3r, vS3y = 176, 177, 178, 179, 180
vE2 = 25
vXc = 1

DPPX = "row_mask:0xf bank_mask:0xf"


def vr(b, n):
    return f"v[{b}:{b+n-1}]" if n > 1 else f"v{b}"


def gen(stamps=False, opt=None):
    opt = opt or {}
    a = Asm()
    a.raw(HEADER.rstrip("\n"))
    a.raw(f"; @launch grid=(256,1,1) block=(512,1,1) lds={LDS_BYTES}")
    a.raw('.amdgcn_target "amdgcn-amd-amdhsa--gfx950"')
    a.raw(".text")
    a.raw(f".globl {NAME}_kernel")
    a.raw(".p2align 8")
    a.raw(f".type {NAME}_kernel,@function")
    a.raw(f"{NAME}_kernel:")
    only = opt.get("only")
    RC = opt.get("rc", 4)
    RE = opt.get("re", 3)
    assert RC <= RCMAX and RE * FPR <= 80 * 5 * 1024

    def stamp(k, layered=False):
        if not stamps:
            return
        if only is not None and k not in only:
            return
        a(f"{'s_memtime' if opt.get('cyc') else 's_memrealtime'} s[{sStampT}:{sStampT+1}]")
        a("s_waitcnt lgkmcnt(0)")
        if layered:
            a(f"s_lshl_b32 s{sStampT+1}, s{sLayer}, 4")
            a(f"s_add_u32 s{sStampT+1}, s{sStampT+1}, {k}")
            a(f"s_mov_b32 m0, s{sStampT+1}")
            a(f"v_writelane_b32 v{vStamp}, s{sStampT}, m0")
        else:
            a(f"v_writelane_b32 v{vStamp}, s{sStampT}, {k}")

    def ortree(rs, tmp):
        if len(rs) == 1:
            return rs[0]
        if len(rs) >= 3:
            a(f"v_or3_b32 v{tmp}, v{rs[0]}, v{rs[1]}, v{rs[2]}")
            i = 3
        else:
            a(f"v_or_b32 v{tmp}, v{rs[0]}, v{rs[1]}")
            i = 2
        while i < len(rs):
            if i + 1 < len(rs):
                a(f"v_or3_b32 v{tmp}, v{tmp}, v{rs[i]}, v{rs[i+1]}")
                i += 2
            else:
                a(f"v_or_b32 v{tmp}, v{tmp}, v{rs[i]}")
                i += 1
        return tmp

    def setbits(v, src=None):
        a(f"v_and_or_b32 v{v}, v{v if src is None else src}, -4, s{sBits}")

    def poll(loads, regs, tmp, sleep=0, spec=None):
        L = a.newlabel("POLL")
        R = a.newlabel("RETRY")
        a(f"s_branch {L}")
        a.label(R)
        if sleep:
            a(f"s_sleep {sleep}")
        a(f"s_add_u32 s{sTO}, s{sTO}, 1")
        a(f"s_cmp_lt_u32 s{sTO}, 40000")
        a(f"s_cselect_b32 s{sMask}, s{sMask}, 0")
        a.label(L)
        for ld in loads:
            a(ld)
        a("s_waitcnt vmcnt(0)")
        if spec:
            spec()
        cur = ortree(list(regs), tmp)
        a(f"v_and_b32 v{tmp}, s{sMask}, v{cur}")
        a(f"v_cmp_ne_u32 vcc, 0, v{tmp}")
        a(f"s_cbranch_vccnz {R}", nohaz=True)

    def rscat(b, dst):
        a(f"v_pk_add_f32 v[20:21], {vr(b,2)}, {vr(b+4,2)}")
        a(f"v_pk_add_f32 v[22:23], {vr(b+2,2)}, {vr(b+6,2)}")
        a(f"v_permlane32_swap_b32 v20, v22")
        a(f"v_permlane32_swap_b32 v21, v23")
        a(f"v_pk_add_f32 v[20:21], v[20:21], v[22:23]")
        a(f"v_permlane16_swap_b32 v20, v21")
        a(f"v_add_f32 v{dst}, v20, v21")

    def mpoll(R, sets, loads, spec, tmp, gap, adv):
        D = a.newlabel("MDONE")
        n = 2
        issued = 0

        def issue():
            nonlocal issued
            if issued:
                adv()
            loads(sets[issued % 3])
            issued += 1
        for k in range(min(3, R)):
            if k and gap:
                a(f"s_sleep {gap}")
            issue()
        for k in range(R - 1):
            a(f"s_waitcnt vmcnt({n * (issued - k - 1)})")
            rs = sets[k % 3]
            spec(rs)
            cur = ortree(list(rs), tmp)
            a(f"v_and_b32 v{tmp}, s{sMask}, v{cur}")
            a(f"v_cmp_ne_u32 vcc, 0, v{tmp}")
            a(f"s_cbranch_vccz {D}")
            if issued < R:
                issue()
        rs = sets[(R - 1) % 3]
        L = a.newlabel("MP")
        Rt = a.newlabel("MR")
        a(f"s_branch {L}")
        a.label(Rt)
        a(f"s_add_u32 s{sTO}, s{sTO}, 1")
        a(f"s_cmp_lt_u32 s{sTO}, 40000")
        a(f"s_cselect_b32 s{sMask}, s{sMask}, 0")
        loads(rs)
        a.label(L)
        a("s_waitcnt vmcnt(0)")
        spec(rs)
        cur = ortree(list(rs), tmp)
        a(f"v_and_b32 v{tmp}, s{sMask}, v{cur}")
        a(f"v_cmp_ne_u32 vcc, 0, v{tmp}")
        a(f"s_cbranch_vccnz {Rt}")
        a.label(D)

    def fast_store(fmt):
        a(fmt.format(srd=srd(SRD_F)))
        return fmt.format(srd=srd(SRD_S)) + " sc1"

    def bf16round(v):
        a(f"v_cvt_pk_bf16_f32 v{v}, v{v}, v{v}")
        a(f"v_lshlrev_b32 v{v}, 16, v{v}")

    def ln_stats(vss, vs, sss=None, ss=None):
        a(f"v_mov_b32 v{vss}, {f32(1/512)}") if sss is not None else None
        if sss is not None:
            a(f"v_mul_f32 v{vs}, s{ss}, v{vss}")
            a(f"v_mul_f32 v{vss}, s{sss}, v{vss}")
        else:
            a(f"v_mul_f32 v{vs}, {f32(1/512)}, v{vs}")
            a(f"v_mul_f32 v{vss}, {f32(1/512)}, v{vss}")
        a(f"v_fma_f32 v{vss}, -v{vs}, v{vs}, v{vss}")
        a(f"v_max_f32 v{vss}, 0, v{vss}")
        a(f"v_add_f32 v{vss}, {f32(1e-5)}, v{vss}")
        a(f"v_rsq_f32 v{vss}, v{vss}")

    def swap_red(op, regs, tmps, which):
        for r, t in zip(regs, tmps):
            a(f"v_mov_b32 v{t}, v{r}")
        for r, t in zip(regs, tmps):
            a(f"v_permlane{which}_swap_b32 v{r}, v{t}")
        for r, t in zip(regs, tmps):
            a(f"{op} v{r}, v{r}, v{t}")

    ROWRED = ("quad_perm:[1,0,3,2]", "quad_perm:[2,3,0,1]", "row_half_mirror", "row_mirror")

    def wave_red_steps(op, regs, tmps):
        st = []
        for dpp in ROWRED:
            st.append(lambda dpp=dpp: [a(f"{op}_dpp v{r}, v{r}, v{r} {dpp} {DPPX}") for r in regs])
        for which in (16, 32):
            st.append(lambda: [a(f"v_mov_b32 v{t}, v{r}") for r, t in zip(regs, tmps)])
            st.append(lambda which=which: [a(f"v_permlane{which}_swap_b32 v{r}, v{t}") for r, t in zip(regs, tmps)] +
                      [a(f"{op} v{r}, v{r}, v{t}") for r, t in zip(regs, tmps)])
        return st

    def smf(d, A, B):
        a(f"v_smfmac_f32_16x16x64_bf16 {vr(d,4)}, {vr(A,4)}, {vr(B,8)}, v{vIdx}")

    def consts():
        if stamps:
            a(f"v_writelane_b32 v{vStamp}, s{sFirst}, 15")
        a(f"s_cmp_lt_u32 s{sJ}, 16")
        a(f"s_cselect_b32 s{sIsS3}, 1, 0")
        a(f"s_min_u32 s{sF}, s{sC}, 3")
        a(f"s_mul_i32 s{sT0}, s{sC}, 5")
        a(f"s_add_u32 s{sF}, s{sF}, s{sT0}")
        a(f"s_add_u32 s{sF}, s{sF}, s{sJ}")
        a(f"s_sub_u32 s{sF}, s{sF}, 16")
        a(f"s_cmp_lt_u32 s{sC}, 3")
        a(f"s_cselect_b32 s{sT0}, 6, 5")
        a(f"s_sub_u32 s{sT1}, s{sJ}, 16")
        a(f"s_cmp_lt_u32 s{sT1}, s{sT0}")
        a(f"s_cselect_b32 s{sIsFFN}, 1, 0")
        a(f"s_cselect_b32 s{sF}, s{sF}, 0")
        a(f"s_or_b32 s{sRole}, s{sIsS3}, s{sIsFFN}")
        a(f"s_mov_b32 s{sTO}, 0")
        a(f"s_mov_b32 s{sLayer}, 0")
        a(f"s_mov_b32 s{sPermLo}, 0x05040100")
        a(f"s_mov_b32 s{sPermHi}, 0x07060302")
        a(f"s_mov_b32 s{sScale}, {f32(1.4426950408889634 / 128 ** 0.5)}")
        a(f"s_mov_b64 s[{sM16}:{sM16+1}], 0xffff")
        a(f"s_mov_b32 s{sMg1}, 0xffff0000")
        a(f"s_mov_b32 s{sMg1+1}, 0")
        a(f"s_mov_b32 s{sMg2}, 0")
        a(f"s_mov_b32 s{sMg2+1}, 0xffff")
        a(f"s_mov_b32 s{sMg3}, 0")
        a(f"s_mov_b32 s{sMg3+1}, 0xffff0000")
        a(f"s_mov_b32 s{sModd}, 0xffff0000")
        a(f"s_mov_b32 s{sModd+1}, 0xffff0000")
        a(f"s_mov_b32 s{sMhi8}, 0xff00ff00")
        a(f"s_mov_b32 s{sMhi8+1}, 0xff00ff00")
        a(f"s_mov_b32 s{sMask}, 1")
        a(f"s_mov_b32 s{sBits}, 2")
        a(f"s_mov_b32 s{SRD_F}, s{SRD_WS}")
        a(f"s_mov_b32 s{SRD_F+1}, s{SRD_WS+1}")
        a(f"s_mov_b32 s{SRD_F+2}, 0")
        a(f"s_lshl_b32 s{sT4}, s{sW}, 12")
        a(f"v_lshrrev_b32 v12, 2, v{vN}")
        a(f"v_lshl_add_u32 v12, v{vG}, 3, v12")
        a(f"v_and_b32 v13, 3, v{vN}")
        a(f"v_lshlrev_b32 v13, 3, v13")
        a(f"v_lshl_add_u32 v{vTr64}, v12, 6, v13")
        a(f"v_lshl_add_u32 v{vTr128}, v12, 7, v13")
        a(f"v_lshl_add_u32 v{vTr256}, v12, 8, v13")
        a(f"v_add_u32 v{vTr64}, s{sT4}, v{vTr64}")
        a(f"v_add_u32 v{vTr128}, s{sT4}, v{vTr128}")
        a(f"v_bfe_u32 v12, v{vN}, 1, 1")
        a(f"v_lshlrev_b32 v12, 4, v12")
        a(f"v_lshl_add_u32 v12, v{vG}, 5, v12")
        a(f"s_lshl_b32 s{sT0}, s{sW}, 7")
        a(f"s_add_u32 s{sT0}, s{sT0}, {L_XT}")
        a(f"v_add_u32 v{vXA}, s{sT0}, v12")
        a(f"v_bfe_u32 v13, v{vN}, 2, 2")
        a(f"v_lshl_add_u32 v13, v13, 2, v{vXA}")
        a(f"v_and_b32 v14, 1, v{vN}")
        a(f"v_lshl_add_u32 v{vXT}, v14, 1, v13")
        a(f"s_mov_b32 s{sInf}, 0x7f800000")
        a(f"s_mov_b32 s{sLD}, 0")
        a(f"s_lshl_b32 s{sQPg}, s{sH}, 12")
        a(f"s_lshl_b32 s{sT1}, s{sS}, 4")
        a(f"s_add_u32 s{sOPst}, s{sQPg}, s{sT1}")
        a(f"s_add_u32 s{sOPst}, s{sOPst}, {OPB}")
        a(f"s_lshl_b32 s{sMLst}, s{sH}, 6")
        a(f"s_and_b32 s{sT1}, s{sS}, 3")
        a(f"s_lshl_b32 s{sT1}, s{sT1}, 4")
        a(f"s_add_u32 s{sMLst}, s{sMLst}, s{sT1}")
        a(f"s_lshr_b32 s{sT1}, s{sS}, 2")
        a(f"s_lshl_b32 s{sT1}, s{sT1}, 3")
        a(f"s_add_u32 s{sMLst}, s{sMLst}, s{sT1}")
        a(f"s_add_u32 s{sMLst}, s{sMLst}, {MLB}")
        a(f"s_lshl_b32 s{sCNst}, s{sU}, 2")
        a(f"s_add_u32 s{sCNst}, s{sCNst}, {CNB}")
        a(f"s_lshl_b32 s{sS3d}, s{sC}, 14")
        a(f"s_lshl_b32 s{sT1}, s{sW}, 11")
        a(f"s_add_u32 s{sS3d}, s{sS3d}, s{sT1}")
        a(f"s_add_u32 s{sS3d}, s{sS3d}, {OPB}")
        a(f"s_lshr_b32 s{sT0}, s{sW}, 1")
        a(f"s_lshl_b32 s{sT1}, s{sC}, 2")
        a(f"s_add_u32 s{sT0}, s{sT0}, s{sT1}")
        a(f"s_lshl_b32 s{sS3c}, s{sT0}, 5")
        a(f"s_add_u32 s{sS3c}, s{sS3c}, {CNB}")
        a(f"s_lshl_b32 s{sS3m}, s{sT0}, 6")
        a(f"s_add_u32 s{sS3m}, s{sS3m}, {MLB}")
        a(f"s_lshr_b32 s{sYPst}, s{sJ}, 1")
        a(f"s_lshl_b32 s{sYPst}, s{sYPst}, 11")
        a(f"s_lshl_b32 s{sT1}, s{sC}, 8")
        a(f"s_add_u32 s{sYPst}, s{sYPst}, s{sT1}")
        a(f"s_and_b32 s{sT1}, s{sJ}, 1")
        a(f"s_lshl_b32 s{sT1}, s{sT1}, 7")
        a(f"s_add_u32 s{sYPst}, s{sYPst}, s{sT1}")
        a(f"s_add_u32 s{sYPst}, s{sYPst}, {YBB}")

    def consts2():
        a(f"s_mov_b32 s{SRD_S}, s{SRD_WS}")
        a(f"s_mov_b32 s{SRD_S+1}, s{SRD_WS+1}")
        a(f"s_mov_b32 s{SRD_S+2}, 0x10000000")
        a(f"v_bfe_u32 v{vIdx}, v{vN}, 1, 1")
        a(f"v_mul_u32_u24 v{vIdx}, 0xaaaa, v{vIdx}")
        a(f"v_add_u32 v{vIdx}, 0x4444, v{vIdx}")

    def zero_d():
        for i in range(8):
            a(f"v_mov_b32 v{VD+i}, 0")
        for i in (8, 10, 12, 14):
            a(f"v_mov_b32 v{VD+i}, 0")

    def persist():
        zero_d()
        for j in range(16):
            a(f"v_mov_b32 v{VPQ+j}, 0")
        a(f"v_and_b32 v16, 1, v{vN}")
        a(f"v_lshlrev_b32 v16, 7, v16")
        a(f"v_bfe_u32 v17, v{vN}, 1, 1")
        a(f"v_lshl_add_u32 v16, v17, 6, v16")
        a(f"v_lshl_add_u32 v16, v{vG}, 4, v16")
        a(f"v_lshrrev_b32 v17, 2, v{vN}")
        a(f"v_mov_b32 v18, {L_ZERO}")
        for q in range(4):
            a(f"v_cmp_eq_u32 vcc, {q}, v17")
            a(f"v_cndmask_b32 v{vQA+q}, v18, v16, vcc")
        a(f"s_lshl_b32 s{sT0}, s{sW}, 9")
        a(f"v_lshl_add_u32 v{vOw}, v{vN}, 5, s{sT0}")
        a(f"v_lshl_add_u32 v{vOw}, v{vG}, 3, v{vOw}")
        a(f"s_lshl_b32 s{sT0}, s{sW}, 8")
        a(f"v_add_u32 v{vWs}, s{sT0}, v{vL4}")
        a(f"v_lshlrev_b32 v{vL8}, 3, v{vLane}")
        a(f"v_and_b32 v{vMr}, 7, v{vLane}")
        a(f"v_lshlrev_b32 v{vMr}, 8, v{vMr}")
        a(f"v_and_b32 v16, 12, v{vL4}")
        a(f"v_lshrrev_b32 v17, 2, v{vLane}")
        a(f"v_lshl_add_u32 v{vOPs}, v17, 8, v16")

    def wa_setup():
        a(f"s_cmp_eq_u32 s{sIsS3}, 1")
        a(f"s_cselect_b32 s{SRD_W1}, s{SRD_WO}, s{SRD_W1}")
        a(f"s_cselect_b32 s{SRD_W1+1}, s{SRD_WO+1}, s{SRD_W1+1}")
        a(f"s_cselect_b32 s{SRD_W1+2}, s{SRD_WO+2}, s{SRD_W1+2}")
        a(f"s_movk_i32 s{sWAs}, 2752")
        a(f"s_cselect_b32 s{sWAs}, 1024, s{sWAs}")
        a(f"s_cselect_b32 s{sT1}, s{sJ}, s{sF}")
        a(f"s_cselect_b32 s{sT5}, s{sC}, 0")
        a(f"v_lshrrev_b32 v16, 2, v{vLane}")
        a(f"v_and_b32 v17, 48, v{vVo}")
        a(f"v_mad_u32_u24 v17, v16, s{sWAs}, v17")
        a(f"s_lshl_b32 s{sT5}, s{sT5}, 19")
        a(f"s_lshl_b32 s{sT1}, s{sT1}, 6")
        a(f"s_add_u32 s{sWA0}, s{sT1}, s{sT5}")
        a(f"s_lshl_b32 s{sWAs}, s{sWAs}, 4")

    a("s_cmp_ge_u32 s2, 256")
    a("s_cbranch_scc1 L_END")
    if stamps:
        a(f"{'s_memtime' if opt.get('cyc') else 's_memrealtime'} s[{sFirst}:{sFirst+1}]")
    for n, off in ((SRD_WQ, 24), (SRD_X, 0), (SRD_K, 8), (SRD_WS, 96), (SRD_V, 16)):
        a(f"s_load_dwordx2 s[{n}:{n+1}], s[0:1], {off}")
    a(f"v_lshrrev_b32 v{vLane}, 6, v0")
    a(f"s_and_b32 s{sC}, s2, 7")
    a(f"v_readfirstlane_b32 s{sW}, v{vLane}")
    a(f"s_lshr_b32 s{sJ}, s2, 3")
    if opt.get("ncl"):
        a(f"s_cmp_ge_u32 s{sC}, {opt['ncl']}")
        a("s_cbranch_scc1 L_END")
    a(f"s_lshl_b32 s{sU}, s{sC}, 5")
    a(f"s_add_u32 s{sU}, s{sU}, s{sJ}")
    a(f"s_lshr_b32 s{sH}, s{sU}, 3")
    a(f"s_and_b32 s{sS}, s{sU}, 7")
    a(f"v_and_b32 v{vLane}, 63, v0")
    a(f"v_and_b32 v{vN}, 15, v0")
    a(f"v_bfe_u32 v{vG}, v0, 4, 2")
    a(f"v_and_b32 v12, 7, v{vN}")
    a(f"v_lshlrev_b32 v12, 10, v12")
    a(f"v_lshrrev_b32 v13, 3, v{vN}")
    a(f"v_lshl_add_u32 v12, v13, 6, v12")
    a(f"v_lshl_add_u32 v{vKo}, v{vG}, 4, v12")
    a(f"v_lshlrev_b32 v{vVo}, 4, v{vLane}")
    a(f"v_lshlrev_b32 v{vL4}, 2, v{vLane}")
    a(f"s_lshl_b32 s{sKV}, s{sU}, 17")
    a(f"s_lshl_b32 s{sT0}, s{sW}, 14")
    a(f"s_add_u32 s{sKV}, s{sKV}, s{sT0}")
    for n, size in ((SRD_K, 0x2000000), (SRD_V, 0x2000000), (SRD_WQ, 0x400000), (SRD_WS, 0x10000000), (SRD_X, 1024),
                    (SRD_WO, 0x400000), (SRD_W1, 512 * 2752), (SRD_W2, 1376 * 1024),
                    (SRD_B1, 2752), (SRD_B2, 1024), (SRD_OUT, 1024)):
        a(f"s_mov_b32 s{n+2}, {size}")
    for i in range(12):
        a(f"s_mov_b32 s{32+4*i+3}, 0x20000")
    a(f"v_mov_b32 v{vStamp}, 0")
    a(f"v_lshlrev_b32 v16, 13, v{vG}")
    a(f"v_lshl_add_u32 v16, v{vN}, 4, v16")
    a(f"s_lshl_b32 s{sT0}, s{sS}, 19")
    a(f"s_lshl_b32 s{sT1}, s{sH}, 8")
    a(f"s_add_u32 s{sT0}, s{sT0}, s{sT1}")
    a(f"v_lshlrev_b32 v17, 4, v{vG}")
    a(f"s_lshl_b32 s{sT1}, s{sS}, 7")
    a(f"v_mov_b32 v18, {EPB}")
    a("s_waitcnt lgkmcnt(0)")
    for n, off in ((SRD_WO, 32), (SRD_W1, 48), (SRD_W2, 64), (SRD_B1, 56), (SRD_B2, 72), (SRD_OUT, 80)):
        a(f"s_load_dwordx2 s[{n}:{n+1}], s[0:1], {off}")
    a(f"s_cmp_lg_u32 s{sW}, 0")
    a("s_cbranch_scc1 L_NOTW0")
    a(f"buffer_load_dwordx2 {vr(VCS,2)}, v18, {srd(SRD_WS)}, 0 offen sc1")
    for i in range(16):
        a(f"s_mov_b32 m0, {L_WQ + i*1024}")
        a(f"buffer_load_dwordx4 v16, {srd(SRD_WQ)}, s{sT0} offen nt lds")
        a(f"s_add_u32 s{sT0}, s{sT0}, {4*8192}")
    a(f"buffer_load_dwordx4 v[20:23], v17, {srd(SRD_X)}, s{sT1} offen")
    a(f"buffer_load_dwordx4 v[24:27], v17, {srd(SRD_X)}, s{sT1} offen offset:64")
    a(f"buffer_load_dwordx4 v[28:31], v{vVo}, {srd(SRD_X)}, 0 offen")

    def bulk(cap, trig=False, lo=0, hi=32):
        n = 0

        def pre():
            if trig and n == opt.get("trig", 16):
                Lt = a.newlabel("NT")
                a(f"s_cmp_lg_u32 s{sW}, {opt.get('trigw', 7)}")
                a(f"s_cbranch_scc1 {Lt}")
                a(f"v_mov_b32 v17, 0")
                a(f"v_mov_b32 v18, 1")
                a(f"ds_write_b32 v17, v18 offset:{L_ACK}")
                a.label(Lt)
            if cap and cap <= n < opt.get("capn", 24):
                a(f"s_waitcnt vmcnt({cap-1})")
        for blk in range(2):
            if lo <= n < hi:
                a(f"s_add_u32 s{sT0}, s{sKV}, {blk*8192}")
            for ko in range(4):
                kg = 2 * blk + (ko >> 1) + 4 * (ko & 1)
                for hf in range(2):
                    if lo <= n < hi:
                        pre()
                        a(f"buffer_load_dwordx4 {vr(VK+8*kg+4*hf,4)}, v{vKo}, {srd(SRD_K)}, s{sT0} offen offset:{ko*256+hf*128} nt")
                    n += 1
        if lo == 0:
            consts2()
        for b in range(2):
            for i in range(8):
                if lo <= n < hi:
                    if i % 4 == 0 or n == lo:
                        a(f"s_add_u32 s{sT0}, s{sKV}, {b*8192 + (i//4)*4096}")
                    base = (VT + 8 * i + 4) if b == 0 else (VS1 + 4 * i)
                    pre()
                    a(f"buffer_load_dwordx4 {vr(base,4)}, v{vVo}, {srd(SRD_V)}, s{sT0} offen offset:{(i%4)*1024} nt")
                n += 1
    bulk(0)
    a("s_barrier")
    consts()
    a("s_branch L_SVC")

    a.label("L_NOTW0")
    a(f"s_cmp_lg_u32 s{sW}, 1")
    a("s_cbranch_scc1 L_NOTW1")
    a(f"buffer_load_dwordx2 {vr(VCS,2)}, v18, {srd(SRD_WS)}, 0 offen sc1")
    a(f"v_mov_b32 v17, 0")
    a(f"ds_write_b32 v{vL4}, v17 offset:{L_FLAG}")
    a(f"v_mov_b32 v17, 0x7f800000")
    a(f"v_lshlrev_b32 v19, 5, v{vLane}")
    a(f"ds_write_b32 v19, v17 offset:{L_M}")
    Lnc = a.newlabel("NOCLR")
    a(f"s_cmp_lt_u32 s{sJ}, 28")
    a(f"s_cbranch_scc1 {Lnc}")
    for i in range(4):
        a(f"v_mov_b32 v{12+i}, -1")
    a(f"s_lshl_b32 s{sT0}, s{sC}, 2")
    a(f"s_add_u32 s{sT0}, s{sT0}, s{sJ}")
    a(f"s_lshl_b32 s{sT0}, s{sT0}, 13")
    a(f"s_add_u32 s{sT0}, s{sT0}, {G - 28*8192}")
    a(f"s_add_u32 s{sT1}, s{sT0}, 4096")
    for i in range(8):
        a(f"buffer_store_dwordx4 v[12:15], v{vVo}, {srd(SRD_WS)}, s{sT0 if i < 4 else sT1} offen offset:{(i%4)*1024} sc1")
    a.label(Lnc)
    a("s_branch L_CONST")

    def mktag():
        a(f"v_readfirstlane_b32 s{sEp}, v{VCS}")
        a(f"v_readfirstlane_b32 s{sT3}, v{VCS+1}")
        a(f"s_getreg_b32 s{sT2}, hwreg(HW_REG_XCC_ID, 0, 4)")
        a(f"s_add_u32 s{sEp}, s{sEp}, 1")
        a(f"s_and_b32 s{sT3}, s{sT3}, 0xffffff00")
        a(f"s_or_b32 s{sT2}, s{sT2}, s{sT3}")
    a.label("L_NOTW1")
    Lnp = a.newlabel("NOPF")
    a(f"s_cmp_lg_u32 s{sW}, 2")
    a(f"s_cbranch_scc1 {Lnp}")
    a(f"s_cmp_ge_u32 s{sJ}, 2")
    a(f"s_cbranch_scc1 {Lnp}")
    a(f"s_getpc_b64 s[{sPC}:{sPC+1}]")
    a.label("L_PC")
    a(f"v_mov_b32 v16, v{vVo}")
    for i in range(opt.get("codekb", 16)):
        a(f"v_min_u32 v17, L_END-L_PC-12, v16")
        a(f"global_load_dwordx4 {vr(VWQ,4)}, v17, s[{sPC}:{sPC+1}]")
        a(f"v_add_u32 v16, 1024, v16")
    a.label(Lnp)
    a.label("L_CONST")
    consts()
    persist()
    a("s_waitcnt lgkmcnt(0)")
    a("s_barrier")
    a(f"s_cmp_lg_u32 s{sW}, 1")
    a(f"s_cbranch_scc1 L_BULK")
    a("s_waitcnt vmcnt(0)")
    mktag()
    a(f"v_mov_b32 v18, s{sEp}")
    a(f"v_mov_b32 v19, s{sT2}")
    a(f"s_lshl_b32 s{sT0}, s{sU}, 7")
    a(f"s_add_u32 s{sT0}, s{sT0}, {FLB}")
    a(f"s_mov_b64 exec, 1")
    a(f"buffer_store_dwordx2 v[18:19], v{vL4}, {srd(SRD_WS)}, s{sT0} offen sc1")
    a(f"s_mov_b64 exec, -1")
    stamp(0)
    a.label("L_BULK")
    NQ = opt.get("nq", 28)
    bulk(opt.get("cap", 4), True, 0, 32 if opt.get("loadonly") else NQ)
    stamp(3) if not opt.get('st3') else None
    if opt.get("loadonly") == 1:
        a("s_waitcnt vmcnt(0)")
        stamp(14)
        a("s_branch L_FIN")
    a("s_branch L_QBAR")
    a.label("L_SVC")
    if opt.get("loadonly") == 1:
        a("s_branch L_FIN")
    a("s_setprio 3")
    a(f"v_mov_b32 v15, 0x3f803f80")
    a(f"s_waitcnt vmcnt(32)")
    stamp(16)
    a(f"v_cmp_eq_u32 vcc, 1, v{vN}")
    for i in range(8):
        a(f"v_cndmask_b32 v{20+i}, v{20+i}, v15, vcc")
    a(f"v_mov_b32 v16, 0")
    a(f"v_mov_b32 v17, 0")
    VTMP = VD
    for q4 in range(4):
        for c2 in range(2):
            cg = q4 * 2 + c2
            for kc in range(2):
                b = VTMP + 8 * c2 + 4 * kc
                off = L_WQ + kc * 32 * 256 + cg * 32
                a(f"ds_read_b64_tr_b16 {vr(b,2)}, v{vTr256} offset:{off}")
                a(f"ds_read_b64_tr_b16 {vr(b+2,2)}, v{vTr256} offset:{off+1024}")
        a(f"v_dot2_f32_bf16 v16, v{28+q4}, v{28+q4}, v16")
        a(f"v_dot2_f32_bf16 v17, v{28+q4}, v15, v17")
        a("s_waitcnt lgkmcnt(0)")
        for c2 in range(2):
            cg = q4 * 2 + c2
            a(f"v_mfma_f32_16x16x32_bf16 {vr(VO+4*cg,4)}, v[20:23], {vr(VTMP+8*c2,4)}, 0")
            a(f"v_mfma_f32_16x16x32_bf16 {vr(VO+4*cg,4)}, v[24:27], {vr(VTMP+8*c2+4,4)}, {vr(VO+4*cg,4)}")
        a("s_nop 3")
    for st in wave_red_steps("v_add_f32", [16, 17], [18, 19]):
        st()
    ln_stats(16, 17)
    for cg in range(8):
        a(f"v_fma_f32 v{VO+4*cg}, -v17, v{VO+4*cg+1}, v{VO+4*cg}")
        a(f"v_mul_f32 v{VO+4*cg}, v16, v{VO+4*cg}")
    a(f"v_add_u32 v16, {L_O}, v{vL4}")
    a(f"s_mov_b64 exec, s[{sM16}:{sM16+1}]")
    for cg in range(8):
        a(f"ds_write2_b32 v16, v{VO+4*cg}, v{VO+4*cg+1} offset0:{cg*16} offset1:{128+cg*16}")
    a(f"s_mov_b64 exec, -1")
    a(f"v_lshlrev_b32 v17, 3, v{vLane}")
    a(f"ds_read_b64 v[24:25], v17 offset:{L_O}")
    a(f"ds_read_b128 v[12:15], v{vVo} offset:{L_O}")
    mktag()
    a(f"v_mov_b32 v29, s{sEp}")
    a(f"v_mov_b32 v31, s{sEp}")
    a(f"s_lshl_b32 s{sT5}, s{sU}, 10")
    a(f"s_add_u32 s{sT5}, s{sT5}, {QGB}")
    a("s_waitcnt lgkmcnt(0)")
    a(f"v_mov_b32 v28, v24")
    a(f"v_mov_b32 v30, v25")
    a(f"buffer_store_dwordx4 v[28:31], v{vVo}, {srd(SRD_WS)}, s{sT5} offen")
    stamp(19) if not opt.get('st3') else None
    for i in range(4):
        setbits(12 + i)
    a(f"v_lshrrev_b32 v27, 5, v{vLane}")
    a(f"v_lshlrev_b32 v27, 17, v27")
    a(f"v_and_b32 v17, 31, v{vLane}")
    a(f"v_lshl_add_u32 v27, v17, 4, v27")
    a(f"s_lshl_b32 s{sT6}, s{sU}, 9")
    a(f"v_bfe_u32 v16, v{vLane}, 2, 3")
    a(f"v_lshlrev_b32 v16, 5, v16")
    a(f"v_and_or_b32 v16, v{vLane}, 3, v16")
    a(f"v_add_u32 v16, 28, v16")
    a(f"s_lshl_b32 s{sT0}, s{sC}, 5")
    a(f"v_add_u32 v17, s{sT0}, v{vLane}")
    a(f"v_cmp_gt_u32 vcc, 32, v{vLane}")
    a(f"v_cndmask_b32 v26, v16, v17, vcc")
    a(f"v_lshlrev_b32 v26, 7, v26")
    a(f"s_mov_b32 s{sT1}, {FLB}")
    a(f"s_lshl_b32 s{sT0}, s{sH}, 13")
    a(f"s_add_u32 s{sT0}, s{sT0}, {QGB}")
    a(f"s_add_u32 s{sT3}, s{sT0}, 4096")
    a(f"v_mov_b32 v17, 0")
    La = a.newlabel("TRIG")
    a.label(La)
    a("s_sleep 2")
    a(f"ds_read_b32 v18, v17 offset:{L_ACK}")
    a("s_waitcnt lgkmcnt(0)")
    a(f"v_cmp_eq_u32 vcc, 0, v18")
    a(f"s_cbranch_vccnz {La}")
    stamp(17)

    def qg_loads():
        for k in range(8):
            a(f"buffer_load_dwordx4 {vr(VO+4*k,4)}, v{vVo}, {srd(SRD_WS)}, s{sT0 if k < 4 else sT3} offen offset:{1024*(k%4)} sc1")
    qg_loads()
    Lf = a.newlabel("FLAG")
    Lfd = a.newlabel("FLAGD")
    a.label(Lf)
    a(f"buffer_load_dwordx2 v[20:21], v26, {srd(SRD_WS)}, s{sT1} offen sc1")
    a("s_waitcnt vmcnt(0)")
    a(f"v_xor_b32 v20, s{sEp}, v20")
    a(f"v_xor_b32 v21, s{sT2}, v21")
    a(f"v_lshrrev_b32 v17, 8, v21")
    a(f"v_or_b32 v16, v20, v17")
    a(f"v_cmp_ne_u32 vcc, 0, v16")
    a(f"s_cbranch_vccz {Lfd}")
    a(f"s_sleep 8")
    a(f"s_add_u32 s{sTO}, s{sTO}, 8")
    a(f"s_cmp_lt_u32 s{sTO}, 40000")
    a(f"s_cbranch_scc1 {Lf}")
    a.label(Lfd)
    a(f"v_cmp_ne_u32 vcc, 0, v21")
    a(f"s_cmp_eq_u32 vcc_lo, 0")
    a(f"s_cselect_b32 s{sFast}, {0 if opt.get('nofast') else 1}, 0")
    a(f"v_mov_b32 v16, s{sFast}")
    a(f"v_mov_b32 v17, {L_FLAG}")
    a(f"ds_write_b32 v17, v16")

    def set_fast():
        a(f"s_cmp_lg_u32 s{sFast}, 0")
        a(f"s_cselect_b32 s{SRD_F+2}, 0x10000000, 0")
        a(f"s_cselect_b32 s{SRD_S+2}, 0, 0x10000000")
    set_fast()
    a(fast_store("buffer_store_dwordx4 v[12:15], v27, {srd}, s%d offen" % sT6))
    a(f"buffer_store_dwordx4 v[28:31], v{vVo}, {srd(SRD_S)}, s{sT5} offen sc1")
    Lq = a.newlabel("QG")
    Lq0 = a.newlabel("QG0")
    Lqd = a.newlabel("QGD")
    a(f"s_branch {Lq0}")
    a.label(Lq)
    qg_loads()
    a("s_waitcnt vmcnt(0)")
    a.label(Lq0)
    a(f"v_mov_b32 v16, 0")
    for k in range(8):
        a(f"v_xor_b32 v{VO+4*k+1}, s{sEp}, v{VO+4*k+1}")
        a(f"v_xor_b32 v{VO+4*k+3}, s{sEp}, v{VO+4*k+3}")
        a(f"v_or3_b32 v16, v16, v{VO+4*k+1}, v{VO+4*k+3}")
    a(f"v_cmp_ne_u32 vcc, 0, v16")
    a(f"s_cbranch_vccz {Lqd}")
    a(f"s_sleep 8")
    a(f"s_add_u32 s{sTO}, s{sTO}, 8")
    a(f"s_cmp_lt_u32 s{sTO}, 40000")
    a(f"s_cbranch_scc1 {Lq}")
    a.label(Lqd)
    stamp(5)
    a(f"v_add_f32 v20, v{VO}, v{VO+4}")
    a(f"v_add_f32 v21, v{VO+2}, v{VO+6}")
    for k in range(2, 8):
        a(f"v_add_f32 v20, v20, v{VO+4*k}")
        a(f"v_add_f32 v21, v21, v{VO+4*k+2}")
    a(f"v_cvt_pk_bf16_f32 v20, v20, v21")
    a(f"v_bfe_u32 v16, v{vLane}, 4, 1")
    a(f"v_lshlrev_b32 v16, 7, v16")
    a(f"v_and_b32 v17, 1, v{vLane}")
    a(f"v_lshl_add_u32 v16, v17, 6, v16")
    a(f"v_lshrrev_b32 v17, 5, v{vLane}")
    a(f"v_lshl_add_u32 v16, v17, 5, v16")
    a(f"v_bfe_u32 v17, v{vLane}, 1, 3")
    a(f"v_lshl_add_u32 v16, v17, 2, v16")
    a(f"ds_write_b32 v16, v20 offset:{L_Q}")
    if opt.get("loadonly") == 2:
        a("s_branch L_FIN")
    persist()
    a("s_branch L_S2W0")

    def qk_softmax(kwait=None):
        for q in range(4):
            a(f"ds_read_b128 {vr(VQQ+4*q,4)}, v{vQA+q} offset:{L_Q}")
        if kwait is not None:
            a(f"s_waitcnt vmcnt({kwait})")
        for q in range(4):
            a(f"s_waitcnt lgkmcnt({3-q})")
            smf(VD, VQQ + 4 * q, VK + 8 * q)
            smf(VD + 4, VQQ + 4 * q, VK + 8 * (q + 4))
        a(f"v_pk_add_f32 v[24:25], {vr(VD,2)}, {vr(VD+2,2)}")
        a(f"v_pk_add_f32 v[22:23], {vr(VD+4,2)}, {vr(VD+6,2)}")
        a(f"v_cndmask_b32_e64 v25, v22, v25, s[{sMhi8}:{sMhi8+1}]")
        a(f"v_cndmask_b32_e64 v24, v24, v23, s[{sMhi8}:{sMhi8+1}]")
        a(f"v_add_f32_dpp v25, v25, v24 row_ror:8 {DPPX}")
        a(f"v_mul_f32 v24, s{sScale}, v25")
        for st in wave_red_steps("v_max_f32", [25], [26]):
            st()
        a(f"v_fma_f32 v24, -v25, s{sScale}, v24")
        a(f"v_exp_f32 v24, v24")
        a(f"v_mul_f32 v25, s{sScale}, v25")
        a(f"v_mov_b32_dpp v26, v24 quad_perm:[1,1,3,3] {DPPX}")
        a(f"v_cvt_pk_bf16_f32 v26, v24, v26")
        a(f"ds_write2st64_b32 v{vWs}, v24, v25 offset0:{L_P//256} offset1:{L_M//256}")

    def pa(q):
        for i in range(4):
            if i > q:
                d = f"row_shl:{4*(i-q)}"
            elif i < q:
                d = f"row_shr:{4*(q-i)}"
            else:
                d = "quad_perm:[0,1,2,3]"
            a(f"v_mov_b32_dpp v{VPQ+4*q+i}, v26 {d} row_mask:0xf bank_mask:{1<<q:#x}")

    def pvm(q):
        smf(VD + 8, VPQ + 4 * q, VT + 16 * q)
        smf(VD + 12, VPQ + 4 * q, VT + 16 * q + 8)

    def factor_loop():
        Lm = a.newlabel("MW")
        a(f"s_mov_b32 s{sT9}, 0")
        a.label(Lm)
        a(f"ds_read_b32 v23, v{vMr} offset:{L_M}")
        a(f"s_add_u32 s{sT9}, s{sT9}, 1")
        a(f"s_cmp_lt_u32 s{sT9}, 100000")
        a(f"s_cselect_b32 s{sT8}, s{sInf}, 0x7fc00000")
        a("s_waitcnt lgkmcnt(0)")
        a(f"v_max_f32_dpp v22, v23, v23 {ROWRED[0]} {DPPX}")
        a(f"v_max_f32_dpp v22, v22, v22 {ROWRED[1]} {DPPX}")
        a(f"v_max_f32_dpp v22, v22, v22 {ROWRED[2]} {DPPX}")
        a(f"v_cmp_eq_f32 vcc, s{sT8}, v22")
        a(f"s_cbranch_vccnz {Lm}", nohaz=True)
        a(f"v_sub_f32 v20, v25, v22")
        a(f"v_exp_f32 v20, v20")

    def pv_fin():
        a(f"v_add_f32 v18, v{VD+8}, v{VD+10}")
        a(f"v_add_f32 v19, v{VD+12}, v{VD+14}")
        a(f"v_pk_mul_f32 v[18:19], v[18:19], v[20:21] op_sel:[0,0] op_sel_hi:[1,0]")
        a(f"ds_write_b64 v{vOw}, v[18:19] offset:{L_O}")

    def ml_pre():
        a(f"v_lshlrev_b32 v16, 1, v{vVo}")
        a(f"v_and_b32 v17, 0x700, v16")
        a(f"ds_read_b32 v23, v17 offset:{L_M}")
        a(f"ds_read_b128 {vr(VQQ,4)}, v16 offset:{L_P}")
        a(f"ds_read_b128 {vr(VQQ+4,4)}, v16 offset:{L_P+16}")
        a("s_waitcnt lgkmcnt(2)")
        a(f"v_sub_f32 v23, v23, v22")
        a(f"v_exp_f32 v23, v23")
        a("s_waitcnt lgkmcnt(0)")
        a(f"v_pk_add_f32 {vr(VQQ,2)}, {vr(VQQ,2)}, {vr(VQQ+2,2)}")
        a(f"v_pk_add_f32 {vr(VQQ+4,2)}, {vr(VQQ+4,2)}, {vr(VQQ+6,2)}")
        a(f"v_pk_add_f32 {vr(VQQ,2)}, {vr(VQQ,2)}, {vr(VQQ+4,2)}")
        a(f"v_add_f32 v16, v{VQQ}, v{VQQ+1}")
        a(f"v_mul_f32 v23, v23, v16")

    def vtrans(b, younger, fuse):
        for e2 in range(4):
            a(f"s_waitcnt vmcnt({younger + 6 - 2*e2})")
            for d in range(4):
                if b == 0:
                    r0 = VT + 8 * (2 * e2) + 4 + d
                    r1 = VT + 8 * (2 * e2 + 1) + 4 + d
                else:
                    r0 = VS1 + 4 * (2 * e2) + d
                    r1 = VS1 + 4 * (2 * e2 + 1) + d
                a(f"v_perm_b32 v{VT + 8*(2*d) + 4*b + e2}, v{r1}, v{r0}, s{sPermLo}")
                a(f"v_perm_b32 v{VT + 8*(2*d+1) + 4*b + e2}, v{r1}, v{r0}, s{sPermHi}")
                if fuse and e2 == 3 and d > 0:
                    pvm(d - 1)
        if fuse:
            pvm(3)

    def wa_own():
        wa_setup()
        a(f"s_lshl_b32 s{sT0}, s{sW}, 2")
        a(f"s_mul_i32 s{sT0}, s{sT0}, s{sWAs}")
        a(f"s_add_u32 s{sWA0}, s{sWA0}, s{sT0}")
        a(f"s_lshl_b32 s{sT2}, s{sW}, 12")
        a(f"s_add_u32 m0, s{sT2}, {L_WA}")
        for i in range(4):
            a(f"buffer_load_dwordx4 v17, {srd(SRD_W1)}, s{sWA0} offen nt lds")
            if i < 3:
                a(f"s_add_u32 s{sWA0}, s{sWA0}, s{sWAs}")
                a(f"s_add_u32 m0, m0, 1024")

    def w2_own():
        a(f"v_lshrrev_b32 v16, 3, v{vLane}")
        a(f"v_and_b32 v17, 0x70, v{vVo}")
        a(f"v_lshl_add_u32 v16, v16, 10, v17")
        a(f"s_lshl_b32 s{sT0}, s{sF}, 15")
        a(f"s_lshl_b32 s{sT1}, s{sW}, 7")
        a(f"s_add_u32 s{sT0}, s{sT0}, s{sT1}")
        a(f"s_lshl_b32 s{sT2}, s{sW}, 12")
        a(f"s_add_u32 m0, s{sT2}, {L_W2}")
        for i in range(4):
            a(f"buffer_load_dwordx4 v16, {srd(SRD_W2)}, s{sT0} offen nt lds")
            if i < 3:
                a(f"s_add_u32 s{sT0}, s{sT0}, {8*1024}")
                a(f"s_add_u32 m0, m0, 1024")
    W2E = opt.get("w2early", 0)
    a.label("L_S2W0")
    qk_softmax(None)
    for q in range(4):
        pa(q)
    vtrans(0, 0, False)
    vtrans(1, 0, True)
    a("s_waitcnt lgkmcnt(0)")
    a("s_barrier")
    Lcl = a.newlabel("NCL")
    a(f"s_cmp_lt_u32 s{sJ}, 22")
    a(f"s_cbranch_scc1 {Lcl}")
    for i in range(4):
        a(f"v_mov_b32 v{VQQ+i}, -1")
    a(f"s_mul_i32 s{sT1}, s{sC}, 10")
    a(f"s_add_u32 s{sT1}, s{sT1}, s{sJ}")
    ncl = (RE * FPR + 80 * 1024 - 1) // (80 * 1024)
    a(f"s_mul_i32 s{sT1}, s{sT1}, {ncl*1024}")
    a(f"s_add_u32 s{sT1}, s{sT1}, {FPA - 22*ncl*1024}")
    for i in range(ncl):
        a(f"buffer_store_dwordx4 {vr(VQQ,4)}, v{vVo}, {srd(SRD_WS)}, s{sT1} offen offset:{(i%4)*1024} sc1")
    a.label(Lcl)
    factor_loop()
    pv_fin()
    Lwe = a.newlabel("WE")
    a(f"s_cmp_eq_u32 s{sRole}, 0")
    a(f"s_cbranch_scc1 {Lwe}")
    wa_own()
    if W2E:
        a(f"s_cmp_eq_u32 s{sIsFFN}, 0")
        a(f"s_cbranch_scc1 L_B2")
        w2_own()
    a("s_branch L_B2")
    a.label(Lwe)
    a("s_waitcnt vmcnt(0)")
    a("s_branch L_B2")

    a.label("L_QBAR")
    a(f"v_mov_b32 v16, {L_FLAG}")
    a("s_waitcnt lgkmcnt(0)")
    a("s_barrier")
    a(f"ds_read_b32 v16, v16")
    a("s_waitcnt lgkmcnt(0)")
    a(f"v_readfirstlane_b32 s{sFast}, v16")
    set_fast()
    stamp(6)
    qk_softmax(NQ - 16)
    bulk(0, False, NQ, 32)
    for q in range(4):
        pa(q)
    factor_loop()
    Lw0 = a.newlabel("W0")
    a(f"s_cmp_lg_u32 s{sW}, 1")
    a(f"s_cbranch_scc1 {Lw0}")
    ml_pre()
    a.label(Lw0)
    vtrans(0, 8, False)
    stamp(7)
    Lnr = a.newlabel("NR")
    a(f"s_cmp_eq_u32 s{sRole}, 0")
    a(f"s_cbranch_scc1 {Lnr}")
    wa_own()
    if W2E:
        Lnf_ = a.newlabel("NF")
        a(f"s_cmp_eq_u32 s{sIsFFN}, 0")
        a(f"s_cbranch_scc1 {Lnf_}")
        w2_own()
        vtrans(1, 8, True)
        pv_fin()
        a("s_branch L_B2", nohaz=True)
        a.label(Lnf_)
    vtrans(1, 4, True)
    pv_fin()
    a("s_branch L_B2", nohaz=True)
    a.label(Lnr)
    vtrans(1, 0, True)
    pv_fin()
    a.label("L_B2")
    a(f"s_cmp_lg_u32 s{sW}, 0")
    a("s_waitcnt lgkmcnt(0)")
    stamp(14, True)
    a("s_barrier")
    stamp(8, True)
    if stamps:
        a(f"s_cmp_lg_u32 s{sW}, 0")
    a(f"s_cbranch_scc1 L_NW0")
    for w in range(8):
        a(f"ds_read_b64 {vr(VQQ+2*w,2)}, v{vL8} offset:{L_O+512*w}")
    a("s_waitcnt lgkmcnt(6)")
    a(f"v_pk_add_f32 v[24:25], {vr(VQQ,2)}, {vr(VQQ+2,2)}")
    for w in range(2, 8):
        a(f"s_waitcnt lgkmcnt({7-w})")
        a(f"v_pk_add_f32 v[24:25], v[24:25], {vr(VQQ+2*w,2)}")
    a(f"v_cvt_pk_bf16_f32 v26, v24, v25")
    setbits(26)
    s1 = fast_store("buffer_store_dword v26, v%d, {srd}, s%d offen" % (vOPs, sOPst))
    a(f"v_lshlrev_b32 v22, 16, v26")
    a(f"v_and_b32 v23, 0xffff0000, v26")
    a(f"v_pk_add_f32 v[24:25], v[24:25], v[22:23] neg_lo:[0,1] neg_hi:[0,1]")
    a(f"v_cvt_pk_bf16_f32 v21, v24, v25")
    setbits(21)
    s2 = fast_store("buffer_store_dword v21, v%d, {srd}, s%d offen offset:128" % (vOPs, sOPst))
    a(s1)
    a(s2)
    stamp(9, True)
    a("s_branch L_S2DONE")
    a.label("L_NW0")
    a(f"s_cmp_gt_u32 s{sW}, 2")
    a(f"s_cbranch_scc1 L_S2DONE")
    a(f"s_cmp_eq_u32 s{sW}, 2")
    a(f"s_cbranch_scc1 L_CAN")
    for st in wave_red_steps("v_add_f32", [23], [16]):
        st()
    setbits(22)
    setbits(23)
    a(f"s_mov_b64 exec, 1")
    a(fast_store("buffer_store_dwordx2 v[22:23], v%d, {srd}, s%d offen" % (vL4, sMLst)))
    a(f"s_mov_b64 exec, -1")
    a("s_branch L_S2DONE")
    a.label("L_CAN")
    a(f"v_mov_b32 v16, s{sBits}")
    a(f"s_mov_b64 exec, 1")
    a(fast_store("buffer_store_dword v16, v%d, {srd}, s%d offen" % (vL4, sCNst)))
    a(f"s_mov_b64 exec, -1")
    a.label("L_S2DONE")
    if opt.get("stop2"):
        a("s_branch L_FIN")
    Lw = a.newlabel("NOW")
    a(f"s_cmp_lg_u32 s{sLayer}, 0")
    a(f"s_cbranch_scc1 {Lw}")
    a("s_setprio 0")
    a(f"v_mov_b32 v16, s{sInf}")
    a(f"ds_write_b32 v{vWs}, v16 offset:{L_M}")
    a(f"s_lshl_b32 s{sT0}, s{sW}, 5")
    a(f"v_add_u32 v16, s{sT0}, v{vTr256}")
    for kc in range(2):
        off = L_WQ + kc * 32 * 256
        a(f"ds_read_b64_tr_b16 {vr(VWQ+4*kc,2)}, v16 offset:{off}")
        a(f"ds_read_b64_tr_b16 {vr(VWQ+4*kc+2,2)}, v16 offset:{off+1024}")
    a(f"s_cmp_eq_u32 s{sRole}, 0")
    a(f"s_cbranch_scc1 L_HOPE")
    Lnf = a.newlabel("NOF")
    Lf2 = a.newlabel("F2")
    a(f"s_cmp_eq_u32 s{sIsFFN}, 0")
    a(f"s_cbranch_scc1 {Lnf}")
    if not W2E:
        w2_own()
    a(f"s_lshl_b32 s{sT1}, s{sW}, 7")
    a(f"v_and_b32 v16, 31, v{vLane}")
    a(f"v_lshlrev_b32 v16, 1, v16")
    a(f"s_lshl_b32 s{sT0}, s{sF}, 6")
    a(f"buffer_load_ushort v{vB1}, v16, {srd(SRD_B1)}, s{sT0} offen")
    a(f"v_lshl_add_u32 v17, v{vN}, 2, v{vG}")
    a(f"v_lshlrev_b32 v17, 1, v17")
    a(f"buffer_load_ushort v{vXres}, v17, {srd(SRD_X)}, s{sT1} offen")
    a(f"v_mov_b32 v16, -1")
    a(f"s_mul_i32 s{sT0}, s{sW}, {FPC}")
    a(f"s_lshl_b32 s{sT1}, s{sF}, 8")
    a(f"s_add_u32 s{sT0}, s{sT0}, s{sT1}")
    a(f"s_add_u32 s{sT0}, s{sT0}, {FPA+LDELTA}")
    for r in range(RE):
        a(f"buffer_store_dword v16, v{vL4}, {srd(SRD_WS)}, s{sT0} offen sc1")
        a(f"s_add_u32 s{sT0}, s{sT0}, {FPR}")
    a(f"s_lshl_b32 s{sT0}, s{sF}, 11")
    a(f"s_lshl_b32 s{sT1}, s{sW}, 8")
    a(f"s_add_u32 s{sT0}, s{sT0}, s{sT1}")
    a(f"s_add_u32 s{sT0}, s{sT0}, {YBB+LDELTA}")
    a(f"buffer_store_dword v16, v{vL4}, {srd(SRD_WS)}, s{sT0} offen sc1")
    if RC * 64 > 344:
        a(f"s_add_u32 s{sT0}, s{sT0}, {344*256}")
        a(f"buffer_store_dword v16, v{vL4}, {srd(SRD_WS)}, s{sT0} offen sc1")
    a(f"s_branch {Lf2}")
    a.label(Lnf)
    a(f"v_and_b32 v{vS3m}, 48, v{vVo}")
    a(f"v_and_b32 v{vS3c}, 28, v{vL4}")
    a(f"s_lshl_b32 s{sT2}, s{sW}, 4")
    a(f"v_mul_u32_u24 v{vS3w}, 144, v{vN}")
    a(f"v_add_u32 v{vS3w}, s{sT2}, v{vS3w}")
    a(f"v_lshl_add_u32 v{vS3w}, v{vG}, 2, v{vS3w}")
    a(f"v_and_b32 v16, 31, v{vLane}")
    a(f"v_lshrrev_b32 v17, 5, v{vLane}")
    a(f"v_mul_u32_u24 v{vS3r}, 144, v16")
    a(f"v_lshl_add_u32 v{vS3r}, v17, 6, v{vS3r}")
    assert RC == 1
    a(f"v_lshlrev_b32 v16, 2, v16")
    a(f"v_add_u32 v17, {YA0-YBB}, v16")
    a(f"v_cmp_gt_u32 vcc, 32, v{vLane}")
    a(f"v_cndmask_b32 v16, v16, v17, vcc")
    a(f"v_mov_b32 v18, {OOB}")
    a(f"v_and_b32 v17, 3, v{vLane}")
    a(f"v_cmp_eq_u32 vcc, 0, v17")
    a(f"v_cndmask_b32 v{vS3y}, v18, v16, vcc")
    a("s_branch L_S3A")

    def wa_read():
        for cg in range(2):
            for kc in range(2):
                off = L_WA + kc * 32 * 64 + cg * 32
                a(f"ds_read_b64_tr_b16 {vr(VWA+8*cg+4*kc,2)}, v{vTr64} offset:{off}")
                a(f"ds_read_b64_tr_b16 {vr(VWA+8*cg+4*kc+2,2)}, v{vTr64} offset:{off+256}")
    a.label(Lf2)
    a(f"v_lshlrev_b32 v16, 1, v{vLane}")
    a(f"s_lshl_b32 s{sT0}, s{sS}, 7")
    a(f"buffer_load_ushort v{vB2}, v16, {srd(SRD_B2)}, s{sT0} offen")
    a(f"buffer_load_ushort v{VCS}, v16, {srd(SRD_X)}, s{sT0} offen")
    assert not W2E and RE == 1 and RC == 1
    a("s_waitcnt vmcnt(10)")
    stamp(1, True)
    wa_read()
    a.label(Lw)

    a(f"s_cmp_eq_u32 s{sIsS3}, 0")
    a("s_cbranch_scc1 L_S4")
    Lsk = a.newlabel("SKC")
    a(f"s_cmp_lt_u32 s{sW}, 2")
    a(f"s_cbranch_scc1 {Lsk}")
    a.label("L_S3C")
    poll([f"buffer_load_dword v16, v{vS3c}, {srd(SRD_WS)}, s{sS3c} offen sc1"], [16], 24)
    a.label(Lsk)
    stamp(2, True)

    def s3_spec():
        a("s_waitcnt lgkmcnt(0)")
        for cg in range(2):
            a(f"v_mfma_f32_16x16x32_bf16 {vr(VD+4*cg,4)}, {vr(VQQ,4)}, {vr(VWA+8*cg,4)}, 0")
        a(f"v_max_f32 v25, v16, v18")
        for cg in range(2):
            a(f"v_mfma_f32_16x16x32_bf16 {vr(VD+4*cg,4)}, {vr(VQQ+4,4)}, {vr(VWA+8*cg+4,4)}, {vr(VD+4*cg,4)}")
        a(f"v_max_f32_dpp v25, v25, v25 quad_perm:[1,0,3,2] {DPPX}")
    s3_loads = [f"buffer_load_dwordx4 {vr(VQQ,4)}, v{vVo}, {srd(SRD_WS)}, s{sS3d} offen sc1",
                f"buffer_load_dwordx4 {vr(VQQ+4,4)}, v{vVo}, {srd(SRD_WS)}, s{sS3d} offen offset:1024 sc1",
                f"buffer_load_dwordx4 v[16:19], v{vS3m}, {srd(SRD_WS)}, s{sS3m} offen sc1"]
    s3_regs = list(range(VQQ, VQQ + 8)) + [16, 17, 18, 19]
    poll(s3_loads, s3_regs, 24, spec=s3_spec)
    a.label("L_S3OK")
    stamp(10, True)

    def s3_weights():
        a(f"v_max_f32_dpp v25, v25, v25 quad_perm:[2,3,0,1] {DPPX}")
        a(f"v_sub_f32 v16, v16, v25")
        a(f"v_sub_f32 v18, v18, v25")
        a(f"v_exp_f32 v16, v16")
        a(f"v_exp_f32 v18, v18")
        a(f"v_mul_f32 v26, v16, v17")
        a(f"v_fmac_f32 v26, v18, v19")
        a(f"v_cndmask_b32_e64 v16, v16, v18, s[{sModd}:{sModd+1}]")
        a(f"v_add_f32_dpp v26, v26, v26 quad_perm:[1,0,3,2] {DPPX}")
        for r in range(2):
            a(f"v_mov_b32_dpp v{20+r}, v16 quad_perm:[{r},{r},{r},{r}] {DPPX}")
        a(f"v_add_f32_dpp v26, v26, v26 quad_perm:[2,3,0,1] {DPPX}")
        for r in range(2, 4):
            a(f"v_mov_b32_dpp v{20+r}, v16 quad_perm:[{r},{r},{r},{r}] {DPPX}")
        a(f"v_rcp_f32 v26, v26")
    s3_weights()
    a(f"v_pk_mul_f32 v[16:17], {vr(VD,2)}, v[20:21]")
    a(f"v_pk_mul_f32 v[18:19], {vr(VD+4,2)}, v[20:21]")
    a(f"v_pk_fma_f32 v[16:17], {vr(VD+2,2)}, v[22:23], v[16:17]")
    a(f"v_pk_fma_f32 v[18:19], {vr(VD+6,2)}, v[22:23], v[18:19]")
    a(f"v_add_f32 v16, v16, v17")
    a(f"v_add_f32 v17, v18, v19")
    a(f"v_pk_mul_f32 v[16:17], v[16:17], v[26:27] op_sel:[0,0] op_sel_hi:[1,0]")
    a(f"ds_write2st64_b32 v{vS3w}, v16, v17 offset0:{L_S3//256} offset1:{L_S3//256+9}")
    a(f"s_cmp_lg_u32 s{sW}, 0")
    a("s_waitcnt lgkmcnt(0)")
    a("s_barrier")
    a("s_cbranch_scc1 L_HOPE")
    for k in range(4):
        a(f"ds_read_b128 {vr(VQQ+4*k,4)}, v{vS3r} offset:{L_S3+16*k}")
    a("s_waitcnt lgkmcnt(3)")
    a(f"v_pk_add_f32 v[16:17], {vr(VQQ,2)}, {vr(VQQ+2,2)}")
    for k in range(1, 4):
        a(f"s_waitcnt lgkmcnt({3-k})")
        a(f"v_pk_add_f32 v[18:19], {vr(VQQ+4*k,2)}, {vr(VQQ+4*k+2,2)}")
        a(f"v_pk_add_f32 v[16:17], v[16:17], v[18:19]")
    a(f"v_add_f32 v18, v16, v17")
    a(f"v_add_f32 v19, v16, v17")
    a(f"v_permlane32_swap_b32 v18, v19")
    a(f"v_add_f32 v16, v18, v19")
    setbits(16)
    for r in range(1, 4):
        a(f"v_mov_b32_dpp v{16+r}, v16 quad_perm:[{r},{r},{r},{r}] {DPPX}")
    a(f"buffer_store_dwordx4 v[16:19], v{vS3y}, {srd(SRD_WS)}, s{sYPst} offen sc1")
    stamp(11, True)
    a(f"s_add_u32 s{sYPst}, s{sYPst}, {LDELTA}")
    a("s_branch L_HOPE")
    a.label("L_S3A")
    for ld in s3_loads:
        a(ld)
    a("s_waitcnt vmcnt(3)")
    stamp(1, True)
    wa_read()
    a("s_waitcnt vmcnt(0)")
    s3_spec()
    ortree(s3_regs, 24)
    a(f"v_and_b32 v24, s{sMask}, v24")
    a(f"v_cmp_ne_u32 vcc, 0, v24")
    a(f"s_cbranch_vccz L_S3OK")
    a("s_branch L_S3C")

    def hope_prep(ffn=False):
        a(f"v_lshlrev_b32 v16, 1, v{vLane}")
        a(f"s_lshl_b32 s{sT0}, s{sS}, 7")
        if not ffn:
            a(f"buffer_load_ushort v{vB2}, v16, {srd(SRD_B2)}, s{sT0} offen")
        a(f"s_lshl_b32 s{sT5}, s{sW}, 6")
        a(f"s_lshl_b32 s{sT6}, s{sU}, 9")
        a(f"s_add_u32 s{sT5}, s{sT5}, s{sT6}")
        a("s_waitcnt lgkmcnt(0)")
        a(f"v_add_u32 v{vS1a}, s{sT5}, v{vL4}")
        a(f"v_mov_b32 v17, {OOB}")
        a(f"v_cndmask_b32_e64 v{vS1a}, v17, v{vS1a}, s[{sM16}:{sM16+1}]")
        a(f"s_lshl_b32 s{sT5}, s{sU}, 3")
        a(f"s_add_u32 s{sT5}, s{sT5}, {STB}")
        a(f"s_cmp_eq_u32 s{sW}, 1")
        a(f"s_cselect_b32 s{sT5}, s{sT5}, {OOB}")
        a(f"v_writelane_b32 v{vS1a}, s{sT5}, 16")
        a(f"s_add_u32 s{sT5}, s{sT5}, 4")
        a(f"v_writelane_b32 v{vS1a}, s{sT5}, 24")
        a(f"v_bfe_u32 v{vQw}, v{vLane}, 3, 1")
        a(f"v_lshlrev_b32 v{vQw}, 7, v{vQw}")
        a(f"v_bfe_u32 v17, v{vLane}, 4, 1")
        a(f"v_lshl_add_u32 v{vQw}, v17, 5, v{vQw}")
        a(f"v_and_b32 v17, 7, v{vLane}")
        a(f"v_lshl_add_u32 v{vQw}, v17, 2, v{vQw}")
        a(f"s_lshl_b32 s{sT5}, s{sH}, 6")
        a(f"s_add_u32 s{sT5}, s{sT5}, {STB}")
        a(f"v_lshl_add_u32 v{vSTa}, v17, 3, s{sT5}")
        a(f"s_lshl_b32 s{sT5}, s{sS}, 8")
        a(f"s_add_u32 s{sT5}, s{sT5}, {L_X1}")
        a(f"v_add_u32 v{vN}, s{sT5}, v{vL4}")
        if not ffn:
            a(f"buffer_load_short_d16_hi v{vXc}, v16, {srd(SRD_X)}, s{sT0} offen")

    def hope_off():
        a(f"s_mul_i32 s{sT1}, s{sS}, {FPC}")
        a(f"s_add_u32 s{sT1}, s{sT1}, s{sLD}")
        a(f"s_add_u32 s{sT1}, s{sT1}, {FPA}")
        a(f"s_lshl_b32 s{sT5}, s{sW}, 10")
        a(f"s_add_u32 s{sT5}, s{sT5}, s{sT1}")
        a(f"s_add_u32 s{sT6}, s{sT5}, 8192")
        a(f"s_cmp_lt_u32 s{sW}, 3")
        a(f"s_cselect_b32 s{sT6}, s{sT6}, {OOB}")

    def hope_e2():
        a(f"s_cmp_eq_u32 s{sW}, 2")
        a(f"s_cselect_b64 vcc, s[{sMg3}:{sMg3+1}], 0")
        a(f"v_mov_b32 v17, {OOB}")
        a(f"v_cndmask_b32 v{vE2}, v{vVo}, v17, vcc")

    def sum4x4(dst, src, t):
        a(f"v_pk_add_f32 {vr(dst,2)}, {vr(src,2)}, {vr(src+4,2)}")
        a(f"v_pk_add_f32 {vr(dst+2,2)}, {vr(src+2,2)}, {vr(src+6,2)}")
        a(f"v_pk_add_f32 {vr(t,2)}, {vr(src+8,2)}, {vr(src+12,2)}")
        a(f"v_pk_add_f32 {vr(t+2,2)}, {vr(src+10,2)}, {vr(src+14,2)}")
        a(f"v_pk_add_f32 {vr(dst,2)}, {vr(dst,2)}, {vr(t,2)}")
        a(f"v_pk_add_f32 {vr(dst+2,2)}, {vr(dst+2,2)}, {vr(t+2,2)}")

    def swap4(dst, t):
        a(f"v_pk_mov_b32 {vr(t,2)}, {vr(dst,2)}, {vr(dst,2)} op_sel:[0,1]")
        a(f"v_pk_mov_b32 {vr(t+2,2)}, {vr(dst+2,2)}, {vr(dst+2,2)} op_sel:[0,1]")
        for r in range(4):
            a(f"v_permlane32_swap_b32 v{dst+r}, v{t+r}")
        a(f"v_pk_add_f32 {vr(dst,2)}, {vr(dst,2)}, {vr(t,2)}")
        a(f"v_pk_add_f32 {vr(dst+2,2)}, {vr(dst+2,2)}, {vr(t+2,2)}")

    def cs_fetch():
        a(f"s_add_u32 s{sT4}, s{sQPg}, {CSB}")
        for k in range(4):
            a(f"buffer_load_dwordx4 {vr(VQQ+4*k,4)}, v{vVo}, {srd(SRD_WS)}, s{sT4} offen offset:{1024*k} sc1")
        a("s_waitcnt vmcnt(0)")
        sum4x4(VCS, VQQ, 20)
        swap4(VCS, 20)

    a.label("L_S4")
    a(f"s_cmp_eq_u32 s{sIsFFN}, 0")
    a("s_cbranch_scc1 L_HOPE")
    Lw = a.newlabel("NOW")
    Lx = a.newlabel("XOK")
    a(f"s_cmp_lg_u32 s{sLayer}, 0")
    a(f"s_cbranch_scc1 {Lw}")
    a(f"v_add_u32 v{VPQ+13}, {L_W2}, v{vTr128}")
    for i in range(4):
        a(f"v_mov_b32 v{20+i}, 0x3f803f80")
    for cg in range(2):
        a(f"v_mov_b32 v{VD+4*cg}, 0")
        a(f"v_mov_b32 v{VD+4*cg+2}, 0")
    a("s_waitcnt lgkmcnt(0)")
    for cg in range(2):
        smf(VD + 4 * cg, 20, VWA + 8 * cg)
    hope_prep(True)
    a(f"v_add_f32 v16, v{VD}, v{VD+2}")
    a(f"v_add_f32 v17, v{VD+4}, v{VD+6}")
    a(f"v_cndmask_b32_e64 v16, v16, v17, s[{sModd}:{sModd+1}]")
    a(f"ds_write_b32 v{vWs}, v16 offset:{L_E}")
    a(f"s_branch {Lx}")
    a.label(Lw)
    a(f"s_lshl_b32 s{sT0}, s{sW}, 8")
    a(f"s_add_u32 s{sT0}, s{sT0}, {XRB}")
    a(f"v_and_b32 v16, 0xf0, v{vVo}")
    a(f"v_lshl_add_u32 v16, v{vG}, 2, v16")
    poll([f"buffer_load_dword v{vXres}, v16, {srd(SRD_WS)}, s{sT0} offen sc1"], [vXres], 24)
    a.label(Lx)
    a(f"s_lshl_b32 s{sT0}, s{sW}, 11")
    a(f"s_add_u32 s{sT0}, s{sT0}, s{sLD}")
    a(f"s_add_u32 s{sT0}, s{sT0}, {YA0}")
    a(f"s_mul_i32 s{sT4}, s{sW}, {FPC}")
    a(f"s_lshl_b32 s{sT6}, s{sF}, 8")
    a(f"s_add_u32 s{sT4}, s{sT4}, s{sT6}")
    a(f"s_add_u32 s{sT4}, s{sT4}, s{sLD}")
    a(f"s_add_u32 s{sT4}, s{sT4}, {FPA}")
    a(f"s_lshl_b32 s{sT6}, s{sW}, 7")
    a(f"s_add_u32 s{sT6}, s{sT6}, {L_XT}")
    a(f"v_lshrrev_b32 v{VPQ+8}, 1, v{vL4}")
    a(f"v_add_u32 v{VPQ+8}, s{sT6}, v{VPQ+8}")
    a(f"v_lshl_add_u32 v{VPQ+9}, v{vG}, 4, s{sT6}")
    a(f"v_and_b32 v16, 0xf0, v{vVo}")
    a(f"v_lshl_add_u32 v16, v{vG}, 2, v16")
    a(f"s_lshl_b32 s{sT5}, s{sW}, 8")
    a(f"s_add_u32 s{sT5}, s{sT5}, {L_X1}")
    a(f"v_add_u32 v{VPQ+10}, s{sT5}, v16")
    a(f"v_bfe_u32 v16, v{vL4}, 4, 2")
    a(f"v_lshl_add_u32 v16, v16, 5, s{sT6}")
    a(f"v_lshrrev_b32 v17, 1, v{vG}")
    a(f"v_lshl_add_u32 v16, v17, 4, v16")
    a(f"v_and_b32 v17, 12, v{vL4}")
    a(f"v_add_u32 v16, v16, v17")
    a(f"v_and_b32 v17, 1, v{vG}")
    a(f"v_lshl_add_u32 v{VPQ+11}, v17, 1, v16")
    a(f"v_mov_b32 v17, {OOB}")
    a(f"v_cndmask_b32_e64 v{VPQ+12}, v17, v{vVo}, s[{sM16}:{sM16+1}]")
    for cg in range(2):
        a(f"v_mov_b32 v{VD+4*cg}, 0")
        a(f"v_mov_b32 v{VD+4*cg+2}, 0")
    hope_off()
    Lt = a.newlabel("TC")
    Lt2 = a.newlabel("TC2")
    a(f"s_cmp_lg_u32 s{sW}, 0")
    a(f"s_cbranch_scc1 {Lt}")
    a(f"s_cmp_eq_u32 s{sLayer}, 0")
    a(f"s_cbranch_scc1 {Lt2}")
    a(f"s_lshl_b32 s{sT1}, s{sC}, 7")
    a(f"s_add_u32 s{sT1}, s{sT1}, {CNB}")
    a(f"v_and_b32 v17, 124, v{vL4}")
    poll([f"buffer_load_dword v16, v17, {srd(SRD_WS)}, s{sT1} offen sc1"], [16], 24)
    if opt.get("dc", 0):
        a(f"s_sleep {opt['dc']}")
    a(f"s_branch {Lt}")
    a.label(Lt2)
    if opt.get("cc", 1):
        a(f"s_mov_b32 s{sT1}, {CCB}")
        a(f"v_lshrrev_b32 v17, 1, v{vMr}")
        a(f"s_mov_b64 exec, 0xff")
        poll([f"buffer_load_dword v16, v17, {srd(SRD_WS)}, s{sT1} offen sc1"], [16], 24)
        a(f"s_mov_b64 exec, -1")
        if opt.get("dc0", 0):
            a(f"s_sleep {opt['dc0']}")
    a.label(Lt)
    a("s_waitcnt lgkmcnt(0)")
    a("s_barrier")
    stamp(2, True)
    c_first = []

    def c_loads(rs):
        for c in range(2):
            a(f"buffer_load_dwordx4 {vr(rs[4*c],4)}, v{vVo}, {srd(SRD_WS)}, s{sT0} offen offset:{c*1024} sc1")
        if c_first:
            return
        c_first.append(1)
        Lc1 = a.newlabel("C1")
        a(f"s_cmp_lg_u32 s{sLayer}, 0")
        a(f"s_cbranch_scc1 {Lc1}")
        for k in range(4):
            a(f"ds_read2st64_b32 {vr(16+2*k,2)}, v{vL4} offset0:{L_E//256+2*k} offset1:{L_E//256+2*k+1}")
        a("s_waitcnt lgkmcnt(0)")
        a(f"v_pk_add_f32 v[16:17], v[16:17], v[18:19]")
        a(f"v_pk_add_f32 v[20:21], v[20:21], v[22:23]")
        a(f"v_pk_add_f32 v[16:17], v[16:17], v[20:21]")
        a(f"v_add_f32 v0, v16, v17")
        a("s_waitcnt vmcnt(2)")
        for cg in range(4):
            a(f"ds_read_b64_tr_b16 {vr(VWB+4*cg,2)}, v{VPQ+13} offset:{cg*32}")
            a(f"ds_read_b64_tr_b16 {vr(VWB+4*cg+2,2)}, v{VPQ+13} offset:{cg*32+512}")
        a(f"v_lshlrev_b32 v{vB1}, 16, v{vB1}")
        a(f"v_lshlrev_b32 v{vXres}, 16, v{vXres}")
        a(f"v_lshlrev_b32 v{vXc}, 16, v{VCS}")
        a.label(Lc1)

    def s4_spec(rs):
        rscat(rs[0], 24)
        bf16round(24)
        a(f"v_add_f32 v25, v24, v{vXres}")
        a(f"v_cvt_pk_bf16_f32 v25, v25, v25")
        a(f"ds_write_b16 v{VPQ+11}, v25")
        a(f"ds_read_b128 {vr(VQQ,4)}, v{vXA}")
        a(f"v_lshlrev_b32 v25, 16, v25")
        a(f"v_mul_f32 v26, v25, v25")
    mpoll(RC, [list(range(b, b + 8)) for b in (VQQ + 8, VD + 8, VPQ)], c_loads, s4_spec, VQQ + 6, opt.get("tc", 4),
          lambda: a(f"s_add_u32 s{sT0}, s{sT0}, {YAR}"))
    stamp(10, True)
    steps = wave_red_steps("v_add_f32", [25, 26], [18, 19])
    a("s_waitcnt lgkmcnt(0)")
    smf(VD, VQQ, VWA)
    steps.pop(0)()
    smf(VD + 4, VQQ, VWA + 8)
    a(f"ds_write_b32 v{VPQ+10}, v24")
    while steps:
        steps.pop(0)()
    a(f"v_add_f32 v16, v{VD}, v{VD+2}")
    a(f"v_add_f32 v17, v{VD+4}, v{VD+6}")
    a(f"v_cndmask_b32_e64 v25, v25, v26, s[{sModd}:{sModd+1}]")
    a(f"v_cndmask_b32_e64 v16, v16, v17, s[{sModd}:{sModd+1}]")
    a(f"v_permlane32_swap_b32 v16, v25")
    a(f"ds_write_b32 v{vWs}, v16 offset:{L_H}")
    a("s_waitcnt lgkmcnt(0)")
    a("s_barrier")
    for k in range(4):
        a(f"ds_read2st64_b32 {vr(16+2*k,2)}, v{vL4} offset0:{L_H//256+2*k} offset1:{L_H//256+2*k+1}")
    k0 = 0.7978845608028654
    k1 = 0.044715
    l2e = 1.4426950408889634
    a(f"v_mov_b32 v26, {f32(-2*l2e*k0)}")
    a(f"v_mov_b32 v25, {f32(1/512)}")
    a("s_waitcnt lgkmcnt(2)")
    a(f"v_pk_add_f32 v[16:17], v[16:17], v[18:19]")
    a("s_waitcnt lgkmcnt(0)")
    a(f"v_pk_add_f32 v[20:21], v[20:21], v[22:23]")
    a(f"v_pk_add_f32 v[16:17], v[16:17], v[20:21]")
    a(f"v_add_f32 v20, v16, v17")
    a(f"v_readlane_b32 s{sT8}, v20, 32")
    a(f"v_readlane_b32 s{sT9}, v20, 48")
    a(f"v_mul_f32 v17, s{sT8}, v25")
    a(f"v_mul_f32 v16, s{sT9}, v25")
    a(f"v_fma_f32 v16, -v17, v17, v16")
    a(f"v_max_f32 v16, 0, v16")
    a(f"v_add_f32 v16, {f32(1e-5)}, v16")
    a(f"v_rsq_f32 v16, v16")
    a(f"v_fma_f32 v20, -v17, v0, v20")
    a(f"v_mul_f32 v20, v16, v20")
    bf16round(20)
    a(f"v_add_f32 v20, v20, v{vB1}")
    bf16round(20)
    a(f"v_mul_f32 v21, v20, v20")
    a(f"v_fmac_f32 v26, {f32(-2*l2e*k0*k1)}, v21")
    a(f"v_mul_f32 v22, v26, v20")
    a(f"v_exp_f32 v22, v22")
    a(f"v_add_f32 v22, 1.0, v22")
    a(f"v_rcp_f32 v22, v22")
    a(f"v_mul_f32 v20, v20, v22")
    a(f"v_cvt_pk_bf16_f32 v20, v20, v20")
    a(f"ds_write_b16 v{VPQ+8}, v20")
    a(f"ds_read_b128 v[20:23], v{VPQ+9}")
    a("s_waitcnt vmcnt(0) lgkmcnt(0)")
    for cg in range(4):
        a(f"v_mfma_f32_16x16x32_bf16 {vr(VQQ+4*cg,4)}, v[20:23], {vr(VWB+4*cg,4)}, 0")
    for cg in range(4):
        setbits(16 + cg, VQQ + 4 * cg)
    a(f"buffer_store_dwordx4 v[16:19], v{VPQ+12}, {srd(SRD_WS)}, s{sT4} offen sc1")
    stamp(11, True)
    a(f"s_cmp_lg_u32 s{sLayer}, 0")
    a("s_cbranch_scc1 L_FIN")
    zero_d()
    for i in range(8, 14):
        a(f"v_mov_b32 v{VPQ+i}, 0")
    hope_e2()
    if opt.get("df", 0):
        a(f"s_sleep {opt['df']}")
    a("s_branch L_HOPE2")

    a.label("L_HOPE")
    Lgo = a.newlabel("GOE")
    a(f"s_cmp_lg_u32 s{sLayer}, 0")
    a(f"s_cbranch_scc1 L_HOPE1")
    Lcc = a.newlabel("NCC")
    a(f"s_lshl_b32 s{sT0}, s{sJ}, 3")
    a(f"s_or_b32 s{sT0}, s{sT0}, s{sW}")
    a(f"s_cmp_lg_u32 s{sT0}, {31*8+3}")
    a(f"s_cbranch_scc1 {Lcc}")
    a(f"s_lshl_b32 s{sT1}, s{sC}, 7")
    a(f"s_add_u32 s{sT0}, s{sT1}, {CCB}")
    a(f"s_add_u32 s{sT1}, s{sT1}, {CNB}")
    a(f"v_and_b32 v17, 124, v{vL4}")
    poll([f"buffer_load_dword v16, v17, {srd(SRD_WS)}, s{sT1} offen sc1"], [16], 24)
    a(f"s_mov_b64 exec, 1")
    a(f"buffer_store_dword v16, v{vL4}, {srd(SRD_WS)}, s{sT0} offen sc1")
    a(f"s_mov_b64 exec, -1")
    a.label(Lcc)
    hope_prep()
    if opt.get("warm", 1):
        Lwm = a.newlabel("NWM")
        a(f"s_cmp_lg_u32 s{sW}, 1")
        a(f"s_cbranch_scc1 {Lwm}")
        a(f"buffer_load_dwordx2 v[18:19], v{vSTa}, {srd(SRD_WS)}, 0 offen sc1")
        for k in range(4):
            a(f"buffer_load_dwordx4 {vr(VQQ+4*k,4)}, v{vVo}, {srd(SRD_WS)}, s{sQPg} offen offset:{1024*k} sc1")
        a(f"s_add_u32 s{sT4}, s{sQPg}, {CSB}")
        for k in range(4):
            a(f"buffer_load_dwordx4 {vr(VQQ+4*k,4)}, v{vVo}, {srd(SRD_F)}, s{sT4} offen offset:{1024*k} sc1")
        a.label(Lwm)
    zero_d()
    a(f"s_branch {Lgo}")
    a.label("L_HOPE1")
    a(f"s_cmp_ge_u32 s{sU}, 8")
    a("s_cbranch_scc1 L_FIN")
    if opt.get("outwarm", 1):
        a(f"buffer_load_dword v18, v{vL4}, {srd(SRD_OUT)}, 0 offen")
    a.label(Lgo)
    hope_off()
    hope_e2()
    Lc = a.newlabel("CAN")
    a(f"s_cmp_lg_u32 s{sW}, 0")
    a(f"s_cbranch_scc1 {Lc}")
    a(f"s_lshl_b32 s{sT3}, s{sS}, 11")
    a(f"s_add_u32 s{sT3}, s{sT3}, {YBB}")
    a(f"s_add_u32 s{sT3}, s{sT3}, s{sLD}")
    poll([f"buffer_load_dwordx4 {vr(VQQ+4*c,4)}, v{vVo}, {srd(SRD_WS)}, s{sT3} offen offset:{c*1024} sc1" for c in range(2)],
         list(range(VQQ, VQQ + 8)), 24, sleep=opt.get("sleep_e", 1))
    stamp(4, True)
    rscat(VQQ, 16)
    bf16round(16)
    a(f"v_and_b32 v17, 0xf0, v{vVo}")
    a(f"v_lshl_add_u32 v17, v{vG}, 2, v17")
    a(f"s_lshl_b32 s{sT3}, s{sS}, 8")
    a(f"s_add_u32 s{sT3}, s{sT3}, {L_X1}")
    a(f"v_add_u32 v17, s{sT3}, v17")
    a(f"ds_write_b32 v17, v16")
    Lcs = a.newlabel("NOCS")
    Lcs2 = a.newlabel("NOCS")
    a(f"s_cmp_lg_u32 s{sLayer}, 0")
    a(f"s_cbranch_scc1 {Lcs}")
    if opt.get("de0", 0):
        a(f"s_sleep {opt['de0']}")
    a(f"s_branch {Lcs2}")
    a.label(Lcs)
    if opt.get("de1", 0):
        a(f"s_sleep {opt['de1']}")
    a.label(Lcs2)
    a("s_waitcnt lgkmcnt(0)")
    a.label(Lc)
    a("s_waitcnt vmcnt(0)")
    a("s_barrier")
    a.label("L_HOPE2")
    stamp(3, True) if opt.get("st3") else None
    a(f"ds_read_b32 v26, v{vN}")
    assert RE == 1
    a(f"s_or_b32 s{sT4}, s{sW}, s{sLayer}")
    Lncs = a.newlabel("NCS")
    a(f"s_cbranch_scc1 {Lncs}")
    a(f"s_add_u32 s{sT4}, s{sQPg}, {CSB}")
    for k in range(4):
        a(f"buffer_load_dwordx4 {vr(VQQ+8+4*k,4)}, v{vVo}, {srd(SRD_WS)}, s{sT4} offen offset:{1024*k} sc1")
    a.label(Lncs)

    e_first = []

    def e_loads(rs):
        a(f"buffer_load_dwordx4 {vr(rs[0],4)}, v{vVo}, {srd(SRD_WS)}, s{sT5} offen sc1")
        a(f"buffer_load_dwordx4 {vr(rs[4],4)}, v{vE2}, {srd(SRD_WS)}, s{sT6} offen sc1")
        if not e_first:
            e_first.append(1)
            a(f"v_and_b32 v{vXc}, 0xffff0000, v{vXc}")
            a("s_waitcnt lgkmcnt(0)")
            a(f"v_add_f32 v26, v26, v{vXc}")
            bf16round(26)

    def e_spec(rs):
        rscat(rs[0], 22)
        a(f"ds_write_b32 v{vWs}, v22 offset:{L_E}")

    def e_adv():
        a(f"s_add_u32 s{sT5}, s{sT5}, {FPR}")
        a(f"s_add_u32 s{sT6}, s{sT6}, {FPR}")
    mpoll(RE, [list(range(b, b + 8)) for b in (VQQ, VQQ + 8, VD)], e_loads, e_spec, 24, opt.get("te", 4), e_adv)
    stamp(12, True)
    a("s_waitcnt lgkmcnt(0)")
    a("s_barrier")
    for k in range(4):
        a(f"ds_read2st64_b32 {vr(16+2*k,2)}, v{vL4} offset0:{L_E//256+2*k} offset1:{L_E//256+2*k+1}")
    a(f"v_lshlrev_b32 v25, 16, v{vB2}")
    a(f"s_cmp_lg_u32 s{sLayer}, 0")
    a("s_waitcnt lgkmcnt(2)")
    a(f"v_pk_add_f32 v[16:17], v[16:17], v[18:19]")
    a("s_waitcnt lgkmcnt(0)")
    a(f"v_pk_add_f32 v[20:21], v[20:21], v[22:23]")
    a(f"v_pk_add_f32 v[16:17], v[16:17], v[20:21]")
    a(f"v_add_f32 v16, v16, v17")
    bf16round(16)
    a(f"v_add_f32 v16, v16, v25")
    bf16round(16)
    a(f"v_add_f32 v16, v16, v26")
    a(f"v_cvt_pk_bf16_f32 v16, v16, v16")
    a(f"ds_write_b16 v{vXT}, v16")
    a(f"ds_read_b128 v[20:23], v{vXA}")
    a("s_cbranch_scc1 L_OUT", nohaz=True)
    a(f"v_lshlrev_b32 v{vXc}, 16, v16")
    a(f"v_mov_b32 v25, v{vXc}")
    a(f"v_mul_f32 v24, v{vXc}, v{vXc}")
    a(f"s_mov_b32 s{sLayer}, 1")
    steps = wave_red_steps("v_add_f32", [24, 25], [18, 19])
    for _ in range(4):
        steps.pop(0)()
    a("s_waitcnt lgkmcnt(0)")
    smf(VD + 12, 20, VWQ)
    a(f"s_lshl_b32 s{sMask}, s{sMask}, 1")
    a(f"s_mov_b32 s{sBits}, 0")
    while steps:
        steps.pop(0)()
    a(f"v_cndmask_b32_e64 v24, v24, v25, s[{sMhi8}:{sMhi8+1}]")
    a(f"v_add_f32 v17, v{VD+12}, v{VD+14}")
    a(f"v_cndmask_b32_e64 v17, v24, v17, s[{sM16}:{sM16+1}]")
    a(f"v_and_b32 v17, -4, v17")
    a(fast_store("buffer_store_dword v17, v%d, {srd}, 0 offen" % vS1a))
    stamp(13)
    a(f"s_mov_b32 s{sLD}, {LDELTA}")
    a(f"v_mov_b32 v{VD+12}, 0")
    a(f"v_mov_b32 v{VD+14}, 0")
    a(f"s_cmp_eq_u32 s{sW}, 0")
    a(f"s_cbranch_scc1 L_HOPA")
    a(f"s_lshl_b32 s{sT0}, s{sS}, 8")
    a(f"s_add_u32 s{sT0}, s{sT0}, {XRB}")
    a(f"s_cmp_lt_u32 s{sU}, 8")
    a(f"s_cselect_b32 s{sT0}, s{sT0}, {OOB}")
    a(f"s_cmp_eq_u32 s{sW}, 1")
    a(f"s_cselect_b32 s{sT0}, s{sT0}, {OOB}")
    a("s_waitcnt vmcnt(0)")
    for i in range(8 if RE >= 3 else 0):
        a(f"v_mov_b32 v{VD+i}, 0")
    a(f"buffer_store_dword v{vXc}, v{vL4}, {srd(SRD_WS)}, s{sT0} offen sc1")
    a(f"s_cmp_lt_u32 s{sW}, 4")
    a(f"s_cbranch_scc0 L_S2B")
    a(f"s_setprio {opt.get('prioa', 1)}")
    a(f"s_branch L_S2B")

    a.label("L_HOPA")
    a(f"s_setprio {opt.get('prioa', 1)}")

    sum4x4(VCS, VQQ + 8, 20)
    swap4(VCS, 20)
    for i in range(8):
        a(f"v_mov_b32 v{VD+i}, 0")
    hl = [f"buffer_load_dwordx2 v[16:17], v{vSTa}, {srd(SRD_WS)}, 0 offen sc1"] + \
         [f"buffer_load_dwordx4 {vr(VQQ+4*k,4)}, v{vVo}, {srd(SRD_WS)}, s{sQPg} offen offset:{1024*k} sc1" for k in range(4)]
    poll(hl, [16, 17] + list(range(VQQ, VQQ + 16)), 24)
    stamp(21)
    a(f"v_add_f32_dpp v16, v16, v16 {ROWRED[0]} {DPPX}")
    a(f"v_add_f32_dpp v17, v17, v17 {ROWRED[0]} {DPPX}")
    a(f"v_pk_add_f32 v[20:21], {vr(VQQ,2)}, {vr(VQQ+4,2)}")
    a(f"v_add_f32_dpp v16, v16, v16 {ROWRED[1]} {DPPX}")
    a(f"v_add_f32_dpp v17, v17, v17 {ROWRED[1]} {DPPX}")
    a(f"v_pk_add_f32 v[22:23], {vr(VQQ+2,2)}, {vr(VQQ+6,2)}")
    a(f"v_add_f32_dpp v16, v16, v16 {ROWRED[2]} {DPPX}")
    a(f"v_add_f32_dpp v17, v17, v17 {ROWRED[2]} {DPPX}")
    a(f"v_pk_add_f32 {vr(VQQ,2)}, {vr(VQQ+8,2)}, {vr(VQQ+12,2)}")
    a(f"v_pk_add_f32 {vr(VQQ+2,2)}, {vr(VQQ+10,2)}, {vr(VQQ+14,2)}")
    a(f"v_mul_f32 v17, {f32(1/512)}, v17")
    a(f"v_mul_f32 v16, {f32(1/512)}, v16")
    a(f"v_pk_add_f32 {vr(VQQ+4,2)}, v[20:21], {vr(VQQ,2)}")
    a(f"v_pk_add_f32 {vr(VQQ+6,2)}, v[22:23], {vr(VQQ+2,2)}")
    a(f"v_pk_add_f32 v[20:21], v[20:21], {vr(VQQ,2)}")
    a(f"v_pk_add_f32 v[22:23], v[22:23], {vr(VQQ+2,2)}")
    a(f"v_fma_f32 v16, -v17, v17, v16")
    a(f"v_max_f32 v16, 0, v16")
    a(f"v_add_f32 v16, {f32(1e-5)}, v16")
    a(f"v_rsq_f32 v16, v16")
    for r in range(4):
        a(f"v_permlane32_swap_b32 v{20+r}, v{VQQ+4+r}")
    a(f"v_pk_add_f32 v[20:21], v[20:21], {vr(VQQ+4,2)}")
    a(f"v_pk_add_f32 v[22:23], v[22:23], {vr(VQQ+6,2)}")
    a(f"v_pk_fma_f32 v[20:21], {vr(VCS,2)}, v[16:17], v[20:21] op_sel:[0,1,0] op_sel_hi:[1,1,1] neg_lo:[1,0,0] neg_hi:[1,0,0]")
    a(f"v_pk_fma_f32 v[22:23], {vr(VCS+2,2)}, v[16:17], v[22:23] op_sel:[0,1,0] op_sel_hi:[1,1,1] neg_lo:[1,0,0] neg_hi:[1,0,0]")
    a(f"v_pk_mul_f32 v[20:21], v[20:21], v[16:17] op_sel:[0,0] op_sel_hi:[1,0]")
    a(f"v_pk_mul_f32 v[22:23], v[22:23], v[16:17] op_sel:[0,0] op_sel_hi:[1,0]")
    a(f"v_cvt_pk_bf16_f32 v20, v20, v21")
    a(f"v_cvt_pk_bf16_f32 v21, v22, v23")
    a(f"ds_write2_b32 v{vQw}, v20, v21 offset0:{L_Q//4} offset1:{L_Q//4+16}")
    for i in range(8 if RE >= 3 else 0):
        a(f"v_mov_b32 v{VD+i}, 0")
    a("s_waitcnt lgkmcnt(0)")

    a.label("L_S2B")
    a("s_barrier")
    stamp(22)
    qk_softmax()
    stamp(23)
    pa(0)
    pa(1)
    pvm(0)
    pa(2)
    pvm(1)
    pa(3)
    a(f"ds_read_b32 v23, v{vMr} offset:{L_M}")
    pvm(2)
    smf(VD + 8, VPQ + 12, VT + 48)
    a("s_waitcnt lgkmcnt(0)")
    a(f"v_max_f32_dpp v22, v23, v23 {ROWRED[0]} {DPPX}")
    smf(VD + 12, VPQ + 12, VT + 56)
    a(f"v_max_f32_dpp v22, v22, v22 {ROWRED[1]} {DPPX}")
    a(f"v_max_f32_dpp v22, v22, v22 {ROWRED[2]} {DPPX}")
    a(f"v_sub_f32 v20, v25, v22")
    a(f"v_cmp_eq_f32 vcc, s{sInf}, v22")
    a(f"v_exp_f32 v20, v20")
    Lok = a.newlabel("FOK")
    a(f"s_cbranch_vccnz L_FRETRY", nohaz=True)
    a.label(Lok)
    pv_fin()
    a("s_setprio 0")
    a(f"s_cmp_lg_u32 s{sW}, 1")
    a(f"s_cbranch_scc1 L_B2", nohaz=True)
    ml_pre()
    a("s_branch L_B2")
    a.label("L_FRETRY")
    factor_loop()
    a(f"s_branch {Lok}")

    a.label("L_OUT")
    a(f"s_cmp_lg_u32 s{sW}, 0")
    a("s_cbranch_scc1 L_FIN")
    a(f"v_lshrrev_b32 v17, 1, v{vL4}")
    a(f"s_lshl_b32 s{sT0}, s{sS}, 7")
    a(f"buffer_store_short v16, v17, {srd(SRD_OUT)}, s{sT0} offen")
    Lne = a.newlabel("NOEP")
    a(f"s_cmp_lg_u32 s{sU}, 0")
    a(f"s_cbranch_scc1 {Lne}")
    a(f"v_mov_b32 v18, {EPB}")
    a(f"v_mov_b32 v19, s{sEp}")
    a(f"s_mov_b64 exec, 1")
    a(f"buffer_store_dword v19, v18, {srd(SRD_WS)}, 0 offen sc1")
    a(f"s_mov_b64 exec, -1")
    a.label(Lne)
    stamp(29)
    a.label("L_FIN")
    if stamps:
        stamp(31)
        a(f"s_lshl_b32 s{sT0}, s2, 10")
        a(f"s_lshl_b32 s{sT1}, s{sW}, 7")
        a(f"s_add_u32 s{sT0}, s{sT0}, s{sT1}")
        a(f"s_add_u32 s{sT0}, s{sT0}, {STAMP}")
        a(f"s_mov_b32 exec_hi, 0")
        a(f"buffer_store_dword v{vStamp}, v{vL4}, {srd(SRD_WS)}, s{sT0} offen")
    a.label("L_END")
    a("s_endpgm")
    a.raw('.section .rodata,"a"')
    a.raw(".p2align 6")
    a.raw(f".amdhsa_kernel {NAME}_kernel")
    a.raw("  .amdhsa_next_free_vgpr 256")
    a.raw("  .amdhsa_next_free_sgpr 102")
    a.raw("  .amdhsa_accum_offset 256")
    a.raw("  .amdhsa_group_segment_fixed_size 0")
    a.raw("  .amdhsa_kernarg_size 104")
    a.raw("  .amdhsa_user_sgpr_count 2")
    a.raw("  .amdhsa_user_sgpr_kernarg_segment_ptr 1")
    a.raw("  .amdhsa_system_sgpr_workgroup_id_x 1")
    a.raw(".end_amdhsa_kernel")
    return a.text()


if __name__ == "__main__":
    E = (29, 31, 9, 11, 13)
    D = dict(rc=1, re=1, dc=16, de0=32, df=18, de1=22)
    open("k16.s", "w").write(gen(False, D))
    open("k16_now.s", "w").write(gen(False, dict(D, outwarm=0)))
    open("k16s.s", "w").write(gen(True, D))
    open("k16_nofast.s", "w").write(gen(True, dict(D, nofast=True)))
```
